```python
import torch

def _softmax(x, axis=-1):
    return torch.softmax(x, dim=axis)
def _gelu(x):
    return torch.nn.functional.gelu(x, approximate="tanh")
def _silu(x):
    return torch.nn.functional.silu(x)
def _sigmoid(x):
    return torch.sigmoid(x)
def _layernorm(x, axis=-1, eps=1e-5):
    m = x.mean(dim=axis, keepdim=True)
    v = x.var(dim=axis, keepdim=True, unbiased=False)
    return (x - m) / torch.sqrt(v + eps)
def _scatter_add(tgt, idx, src, axis=0):
    return tgt.clone().index_add_(axis, idx, src)
def _segment_sum(src, seg, n):
    out = torch.zeros((n,) + src.shape[1:], dtype=src.dtype)
    return out.index_add_(0, seg, src)
def _pad(x, pw):
    flat = tuple(v for pair in reversed(pw) for v in pair)
    return torch.nn.functional.pad(x, flat)

kernel_name = 'parallel_sum__softmax_full_mha__glu_gated_geglu__prompt'

def setup_inputs():

    _w = (lambda a: (lambda t: t.to(torch.bfloat16) if t.is_floating_point() else t)(torch.as_tensor(a)))
    def _A_setup():
        B, S, D = 1, 2048, 576
        return {
            "x": _w((lambda *s: torch.randn(*s, dtype=torch.bfloat16) * 0.05)(B, S, D)),
            "wqkv": _w((lambda *s: torch.randn(*s, dtype=torch.bfloat16) * 0.05)(D, 3 * D)),
            "wo": _w((lambda *s: torch.randn(*s, dtype=torch.bfloat16) * 0.05)(D, D)),
        }
    _A_in = _A_setup()

    def _B_setup():
        B, S, Dm, Df = 1, 2048, 576, 4608
        return {
            "x": _w((lambda *s: torch.randn(*s, dtype=torch.bfloat16) * 0.05)(B, S, Dm)),
            "w_gate": _w((lambda *s: torch.randn(*s, dtype=torch.bfloat16) * 0.8)(Dm, Df) * (Dm ** -0.5)),
            "w_up": _w((lambda *s: torch.randn(*s, dtype=torch.bfloat16) * 0.8)(Dm, Df) * (Dm ** -0.5)),
            "w_down": _w((lambda *s: torch.randn(*s, dtype=torch.bfloat16) * 0.8)(Df, Dm) * (Df ** -0.5)),
        }
    _B_in = _B_setup()

    return {
        "A_x": _A_in["x"],
        "A_wqkv": _A_in["wqkv"],
        "A_wo": _A_in["wo"],
        "B_x": _B_in["x"],
        "B_w_gate": _B_in["w_gate"],
        "B_w_up": _B_in["w_up"],
        "B_w_down": _B_in["w_down"],
    }

def reference(A_x, A_wqkv, A_wo, B_x, B_w_gate, B_w_up, B_w_down):
    def _A_ref(x, wqkv, wo):
        B, S, D = x.shape
        H = 32; Dh = D // H
        qkv = (lambda x, *d: x.permute(*d))((x @ wqkv).reshape(B, S, 3, H, Dh), 2, 0, 3, 1, 4)
        q, k, v = qkv[0], qkv[1], qkv[2]
        scale = Dh ** -0.5
        scores = torch.einsum("bhqd,bhkd->bhqk", q, k) * scale
        p = _softmax(scores, axis=-1)
        o = torch.einsum("bhqk,bhkd->bhqd", p, v)
        return (lambda x, *d: x.permute(*d))(o, 0, 2, 1, 3).reshape(B, S, D) @ wo

    def _B_ref(x, w_gate, w_up, w_down):
        g = torch.einsum("bsd,df->bsf", x, w_gate)
        u = torch.einsum("bsd,df->bsf", x, w_up)
        h = _gelu(g) * u
        return torch.einsum("bsf,fd->bsd", h, w_down)

    x = A_x
    xn = _layernorm(x, axis=-1)
    return x + _A_ref(xn, A_wqkv, A_wo) + _B_ref(xn, B_w_gate, B_w_up, B_w_down)
```

```python
from common import *
from layout import *
import la2 as la
from la2 import S_W, S_RB, S_FC, R_WS, R_DBG, S_T, S_T2, fbits, stamp

LDS_KM = 0; LDS_V = 65536; LDS_KR = 147456; LDS_ONE = 155648
LDS_TOTAL = 155904
S_HEAD, S_QB = 44, 45
S_KMO, S_VO, S_KRO = 46, 47, 48
S_KML, S_VL, S_KRL = 49, 50, 51
S_MODE = 52
S_QMO, S_QRO = 53, 54
S_RED, S_RO = 55, 56
S_OMO, S_ORO = 57, 58
S_C0, S_C1 = 59, 60
S_SPIN = 61
S_C2 = 62
SA, SB = 0, 16
PA, PB = 32, 40
V_KM, V_KR, V_KRI, V_V = 48, 49, 50, 51
V_L16, V_KRG, V_T = 52, 53, 54
V_QT = 62
V_MA, V_MB = 72, 73
V_POLL = 74
V_ZERO = 75
V_L, V_PL, V_SIGD, V_SIGO = 76, 77, 78, 79
RD = 80
RDA = 104
RACC = 224
QA, QB_ = 0, 4
QVA, QVB = 8, 24
KMb = (40, 44); KRb = (48, 52); Vb = (56, 64)
OA, OB = 72, 88

def M32(d, a, b, c): return f"v_mfma_f32_32x32x16_bf16 {d}, {a}, {b}, {c}"

def poll_check(k, tag, soff, target, name, vpoll, voff):
    e = k.e
    k.wait_vm(tag)
    e(f"s_cmp_lg_u32 s{S_W}, 0"); e(f"s_cbranch_scc1 L_pollok_{name}")
    e(f"s_mov_b32 s{S_SPIN}, 0")
    k.label(f"L_poll_{name}")
    e(f"v_readfirstlane_b32 s{S_T}, v{vpoll}")
    e(f"s_add_u32 s{S_SPIN}, s{S_SPIN}, 1")
    e(f"s_cmp_ge_u32 s{S_T}, {target}"); e(f"s_cbranch_scc1 L_pollok_{name}")
    e(f"s_cmp_ge_u32 s{S_SPIN}, 0x8000"); e(f"s_cbranch_scc1 L_pollok_{name}")
    e(f"buffer_load_dword v{vpoll}, v{voff}, s[{R_DBG}:{R_DBG+3}], {soff} offen sc1")
    e("s_waitcnt vmcnt(0)")
    e(f"s_branch L_poll_{name}")
    k.label(f"L_pollok_{name}")

def setup_scalars(k):
    e = k.e
    e(f"s_and_b32 s{S_HEAD}, s2, 7"); e(f"s_bfe_u32 s{S_T}, s2, 0x20003"); e(f"s_lshl_b32 s{S_T}, s{S_T}, 3"); e(f"s_add_u32 s{S_HEAD}, s{S_HEAD}, s{S_T}")
    e(f"s_lshr_b32 s{S_QB}, s2, 5")
    e(f"s_add_u32 s{S_T}, s{S_HEAD}, 32"); e(f"s_lshl_b32 s{S_KMO}, s{S_T}, 16"); e(f"s_lshl_b32 s{S_KML}, s{S_W}, 12"); e(f"s_add_u32 s{S_KMO}, s{S_KMO}, s{S_KML}")
    if QM: e(f"s_add_u32 s{S_KMO}, s{S_KMO}, {QM}")
    e(f"s_mul_i32 s{S_VO}, s{S_HEAD}, {VT_HEAD}"); e(f"s_mul_i32 s{S_VL}, s{S_W}, 5120"); e(f"s_add_u32 s{S_VO}, s{S_VO}, s{S_VL}"); e(f"s_add_u32 s{S_VO}, s{S_VO}, {VT}")
    e(f"s_add_u32 s{S_VL}, s{S_VL}, {LDS_V}")
    e(f"s_lshl_b32 s{S_KRO}, s{S_T}, 13"); e(f"s_lshl_b32 s{S_KRL}, s{S_W}, 9"); e(f"s_add_u32 s{S_KRO}, s{S_KRO}, s{S_KRL}"); e(f"s_add_u32 s{S_KRO}, s{S_KRO}, {QR}")
    e(f"s_add_u32 s{S_KRL}, s{S_KRL}, {LDS_KR}")
    e(f"s_lshl_b32 s{S_T}, s{S_QB}, 3"); e(f"s_lshl_b32 s{S_T+1}, s{S_W}, 1"); e(f"s_add_u32 s{S_T}, s{S_T}, s{S_T+1}")
    e(f"s_lshl_b32 s{S_QMO}, s{S_HEAD}, 16"); e(f"s_lshl_b32 s{S_T+1}, s{S_T}, 10"); e(f"s_add_u32 s{S_QMO}, s{S_QMO}, s{S_T+1}")
    if QM: e(f"s_add_u32 s{S_QMO}, s{S_QMO}, {QM}")
    e(f"s_lshl_b32 s{S_QRO}, s{S_HEAD}, 13"); e(f"s_lshl_b32 s{S_T+1}, s{S_T}, 7"); e(f"s_add_u32 s{S_QRO}, s{S_QRO}, s{S_T+1}"); e(f"s_add_u32 s{S_QRO}, s{S_QRO}, {QR}")
    e(f"s_lshl_b32 s{S_OMO}, s{S_HEAD}, 16"); e(f"s_lshl_b32 s{S_T+1}, s{S_T}, 10"); e(f"s_add_u32 s{S_OMO}, s{S_OMO}, s{S_T+1}"); e(f"s_add_u32 s{S_OMO}, s{S_OMO}, {OM}")
    e(f"s_lshl_b32 s{S_ORO}, s{S_T}, 12"); e(f"s_lshl_b32 s{S_T+1}, s{S_HEAD}, 2"); e(f"s_add_u32 s{S_ORO}, s{S_ORO}, s{S_T+1}"); e(f"s_add_u32 s{S_ORO}, s{S_ORO}, {OR_}")
    e(f"s_mul_i32 s{S_RED}, s{S_RB}, 147456"); e(f"s_mul_i32 s{S_T+1}, s{S_FC}, 9216"); e(f"s_add_u32 s{S_RED}, s{S_RED}, s{S_T+1}")
    e(f"s_mul_i32 s{S_T+1}, s{S_W}, 2304"); e(f"s_add_u32 s{S_RED}, s{S_RED}, s{S_T+1}")
    e(f"s_lshl_b32 s{S_RO}, s{S_RED}, 1"); e(f"s_add_u32 s{S_RO}, s{S_RO}, {RR}"); e(f"s_add_u32 s{S_RED}, s{S_RED}, {PART}")
    e(f"s_mov_b32 s{S_C0}, 0x00003f80"); e(f"s_mov_b32 s{S_C1}, 0x3f800000")
    e(f"s_mov_b32 s{S_MODE}, 0")
    e(f"s_lshl_b32 s{S_C2}, s{S_RB}, 2"); e(f"s_add_u32 s{S_C2}, s{S_C2}, 4")

def setup_vec(k, L):
    e = k.e; t0, t1, t2 = V_T, V_T+1, V_T+2
    e(f"v_lshlrev_b32 v{V_L16}, 4, v{L}")
    e(f"v_and_b32 v{t0}, 3, v{L}"); e(f"v_lshlrev_b32 v{t0}, 5, v{t0}"); e(f"v_lshrrev_b32 v{t1}, 2, v{L}"); e(f"v_add_u32 v{t0}, v{t0}, v{t1}"); e(f"v_lshlrev_b32 v{V_KRG}, 2, v{t0}")
    e(f"v_and_b32 v{t0}, 7, v{L}"); e(f"v_bfe_u32 v{t1}, v{L}, 3, 1"); e(f"v_lshl_or_b32 v{t0}, v{t1}, 4, v{t0}"); e(f"v_bfe_u32 v{t1}, v{L}, 4, 1"); e(f"v_lshl_or_b32 v{t0}, v{t1}, 3, v{t0}")
    e(f"v_lshlrev_b32 v{t0}, 4, v{t0}")
    e(f"v_lshrrev_b32 v{t1}, 5, v{L}")
    e(f"v_lshl_add_u32 v{V_KM}, v{t1}, 9, v{t0}")
    e(f"v_add_u32 v{t0}, {LDS_KR}, v{t0}"); e(f"v_mov_b32 v{t2}, {LDS_ONE}"); e(f"v_cmp_eq_u32 vcc, 0, v{t1}")
    e(f"v_mov_b32 v{V_T+3}, 512"); e(f"v_mov_b32 v{V_T+4}, 0")
    e(f"v_cndmask_b32 v{V_KR}, v{t2}, v{t0}, vcc"); e(f"v_cndmask_b32 v{V_KRI}, v{V_T+4}, v{V_T+3}, vcc")
    e(f"v_and_b32 v{t0}, 31, v{L}"); e(f"v_min_u32 v{t0}, 19, v{t0}"); e(f"v_lshlrev_b32 v{t0}, 6, v{t0}"); e(f"v_lshl_add_u32 v{t0}, v{t1}, 4, v{t0}"); e(f"v_add_u32 v{V_V}, {LDS_V}, v{t0}")

def kv_dma(k, g):
    e = k.e
    e(f"s_add_u32 m0, s{S_KML}, {g*16384}"); e(f"s_add_u32 s{S_T2}, s{S_KMO}, {g*16384}")
    for n in range(4):
        k.vmem(f"buffer_load_dwordx4 v{V_L16}, s[{R_WS}:{R_WS+3}], s{S_T2} offen offset:{n*1024} sc1 lds", ("kv", g))
    e(f"s_add_u32 m0, s{S_VL}, {g*20480}"); e(f"s_add_u32 s{S_T2}, s{S_VO}, {g*20480}")
    for n in range(4):
        k.vmem(f"buffer_load_dwordx4 v{V_L16}, s[{R_WS}:{R_WS+3}], s{S_T2} offen offset:{n*1024} sc1 lds", ("kv", g))
    e(f"s_add_u32 m0, s{S_VL}, {g*20480 + 4096}"); e(f"s_add_u32 s{S_T2}, s{S_VO}, {g*20480 + 4096}")
    k.vmem(f"buffer_load_dwordx4 v{V_L16}, s[{R_WS}:{R_WS+3}], s{S_T2} offen sc1 lds", ("kv", g))
    for n in range(2):
        e(f"s_add_u32 m0, s{S_KRL}, {g*2048 + n*256}"); e(f"s_add_u32 s{S_T2}, s{S_KRO}, {g*2048 + n*64}")
        k.vmem(f"buffer_load_dword v{V_KRG}, s[{R_WS}:{R_WS+3}], s{S_T2} offen sc1 lds", ("kv", g))

def q_loads(k, L):
    e = k.e; t0 = V_T
    e(f"v_and_b32 v{t0}, 31, v{L}"); e(f"v_lshlrev_b32 v{t0}, 2, v{t0}")
    k.vmem(f"buffer_load_dwordx4 {vr(V_QT,4)}, v{V_L16}, s[{R_WS}:{R_WS+3}], s{S_QMO} offen sc1", "q")
    k.vmem(f"buffer_load_dwordx4 {vr(V_QT+4,4)}, v{V_L16}, s[{R_WS}:{R_WS+3}], s{S_QMO} offen offset:1024 sc1", "q")
    k.vmem(f"buffer_load_dword v{V_QT+8}, v{t0}, s[{R_WS}:{R_WS+3}], s{S_QRO} offen sc1", "q")
    k.vmem(f"buffer_load_dword v{V_QT+9}, v{t0}, s[{R_WS}:{R_WS+3}], s{S_QRO} offen offset:128 sc1", "q")

def build_qv(k, with_m):
    e = k.e; t0 = V_T
    e(f"v_mbcnt_lo_u32_b32 v{t0}, -1, 0"); e(f"v_mbcnt_hi_u32_b32 v{t0}, -1, v{t0}"); e(f"v_cmp_gt_u32 vcc, 32, v{t0}")
    e(f"v_mov_b32 v{t0+1}, 0"); e("s_nop 0")
    for t, (QV, rem, pm) in enumerate(((QVA, V_QT+8, V_MA), (QVB, V_QT+9, V_MB))):
        e(f"v_cndmask_b32 v{t0+2+t}, v{pm if with_m else t0+1}, v{rem}, vcc")
    for t, QV in enumerate((QVA, QVB)):
        for b in range(4):
            for r in range(4):
                e(f"v_accvgpr_write_b32 a{QV+4*b+r}, v{t0+2+t if r == b else t0+1}")

def row_max(k, S, dst, t):
    e = k.e
    e(f"v_max3_f32 v{dst}, v{S}, v{S+1}, v{S+2}")
    for i in range(3, 15, 2): e(f"v_max3_f32 v{dst}, v{dst}, v{S+i}, v{S+i+1}")
    e(f"v_max_f32 v{dst}, v{dst}, v{S+15}")
    half_max(k, dst, t)
def half_max(k, dst, t):
    e = k.e
    e(f"v_mov_b32 v{t}, v{dst}"); e("s_nop 1"); e(f"v_permlane32_swap_b32 v{dst}, v{t}"); e("s_nop 1"); e(f"v_max_f32 v{dst}, v{dst}, v{t}")
def pack_negm(k, m, dst, t):
    e = k.e
    e(f"v_sub_f32 v{m}, 0, v{m}")
    e(f"v_cvt_pk_bf16_f32 v{t}, v{m}, v{m}"); e(f"v_lshlrev_b32 v{t}, 16, v{t}")
    e(f"v_sub_f32 v{m}, v{m}, v{t}"); e(f"v_cvt_pk_bf16_f32 v{dst}, v{t}, v{m}")

def qk(S, km, kr, Q, QV, b):
    return [M32(vr(S,16), ar(km,4), ar(Q,4), "0"), M32(vr(S,16), ar(kr,4), ar(QV+4*b,4), vr(S,16))]
def pv(O, V, P):
    return [M32(ar(O,16), ar(V,4), vr(P,4), ar(O,16)), M32(ar(O,16), ar(V+4,4), vr(P+4,4), ar(O,16))]
def rd_km(j): return f"ds_read_b128 {ar(KMb[j & 1],4)}, v{V_KM} offset:{j*1024}"
def rd_v(j, vbase): return [f"ds_read_b128 {ar(Vb[j & 1]+4*n,4)}, v{V_V} offset:{j*1280 - vbase + 32*n}" for n in range(2)]
def rd_kr(J): return f"ds_read_b128 {ar(KRb[J & 1],4)}, v{V_KR}"

def first_max(k):
    e = k.e
    k.lds(rd_km(0), "km0"); k.lds(rd_kr(0), "km0")
    for i in range(4):
        e(f"v_accvgpr_write_b32 a{QA+i}, v{V_QT+i}"); e(f"v_accvgpr_write_b32 a{QB_+i}, v{V_QT+4+i}")
    build_qv(k, False)
    k.wait_ds("km0")
    for m in qk(SA, KMb[0], KRb[0], QA, QVA, 0) + qk(SB, KMb[0], KRb[0], QB_, QVB, 0): e(m)
    e("s_nop 7"); e("s_nop 3")
    row_max(k, SA, V_MA, V_T); row_max(k, SB, V_MB, V_T)
    pack_negm(k, V_MA, V_MA, V_T); pack_negm(k, V_MB, V_MB, V_T)
    build_qv(k, True)

def part(k, S, P, ms, prevS, prevP, extra):
    e = k.e
    ex = lambda i: e(f"v_exp_f32 v{S+i}, v{S+i}")
    cv = lambda i: e(f"v_cvt_pk_bf16_f32 v{P+i}, v{S+2*i}, v{S+2*i+1}")
    ex(0); ex(1)
    if prevS is not None: e(f"v_cvt_pk_bf16_f32 v{prevP+7}, v{prevS+14}, v{prevS+15}")
    for s in range(4):
        if ms[s]: e(ms[s])
        for x in extra.get(s, []): x()
        if s < 3:
            ex(2+4*s); ex(3+4*s); cv(2*s); ex(4+4*s); ex(5+4*s); cv(2*s+1)
        else:
            ex(14); ex(15); cv(6)

def main_loop(k):
    e = k.e
    k.label("L_attn_main")
    for i in range(16):
        e(f"v_accvgpr_write_b32 a{OA+i}, 0"); e(f"v_accvgpr_write_b32 a{OB+i}, 0")
    for m in qk(SA, KMb[0], KRb[0], QA, QVA, 0): e(m)
    e("s_nop 7"); e("s_nop 3")
    vbase = 0
    for j in range(64):
        J, b = divmod(j, 4)
        exA = {}
        def sync_section(j=j):
            g = (j+1)//16
            e(f"s_cmp_lg_u32 s{S_MODE}, 0"); e(f"s_cbranch_scc1 L_nosync_{j}")
            if g == 1:
                k.wait_vm(("kv", 1)); e("s_barrier")
            elif g == 2:
                k.wait_vm("pst"); e("s_barrier")
                k.vmem(f"buffer_atomic_add v{V_SIGD}, v{V_SIGO}, s[{R_DBG}:{R_DBG+3}], s{S_C2} offen", "sig2")
            else:
                poll_check(k, "poll2", f"s{S_C2}", 16, "part", V_POLL, V_SIGO)
                e("s_barrier")
                reducer_loads(k)
            k.label(f"L_nosync_{j}")
        if j == 40:
            e(f"s_cmp_lg_u32 s{S_MODE}, 0"); e(f"s_cbranch_scc1 L_nopoll")
            k.vmem(f"buffer_load_dword v{V_POLL}, v{V_SIGO}, s[{R_DBG}:{R_DBG+3}], s{S_C2} offen sc1", "poll2")
            k.label("L_nopoll")
        if j % 16 == 15 and j < 63: sync_section()
        def rdsA(j=j):
            if j < 63: k.lds(rd_km(j+1), ("a", j))
            if j < 63 and (j+1) % 4 == 0:
                e(f"v_add_u32 v{V_KR}, v{V_KR}, v{V_KRI}"); k.lds(rd_kr((j+1)//4), ("a", j))
        nonlocal_v = [vbase]
        if j % 32 == 0 and j > 0:
            e(f"v_add_u32 v{V_V}, {32*1280}, v{V_V}"); vbase += 32*1280
        vb = vbase
        def rdsV(j=j, vb=vb):
            for r in rd_v(j, vb): k.lds(r, ("a", j))
        def pstores(j=j):
            if j < 18:
                e(f"s_cmp_lg_u32 s{S_MODE}, 0"); e(f"s_cbranch_scc1 L_nopst_{j}")
                for dt in (2*j, 2*j+1):
                    if dt % 4 == 0: e(f"s_add_u32 s{S_T2}, s{la.S_POFF}, {dt*1024}")
                    k.vmem(f"buffer_store_dwordx4 {vr(RD+4*dt,4)}, v{V_PL}, s[{R_WS}:{R_WS+3}], s{S_T2} offen offset:{(dt%4)*1024} sc1", "pst")
                k.label(f"L_nopst_{j}")
        msA = qk(SB, KMb[j & 1], KRb[J & 1], QB_, QVB, b) + (pv(OB, Vb[(j-1) & 1], PB) if j > 0 else [None, None])
        part(k, SA, PA, msA, SB if j > 0 else None, PB, {0: [rdsA], 1: [rdsV], 2: [pstores]})
        k.wait_ds(("a", j))
        J1, b1 = divmod(j+1, 4)
        msB = (qk(SA, KMb[(j+1) & 1], KRb[J1 & 1], QA, QVA, b1) if j < 63 else [None, None]) + pv(OA, Vb[j & 1], PA)
        part(k, SB, PB, msB, SA, PA, {})
    e(f"v_cvt_pk_bf16_f32 v{PB+7}, v{SB+14}, v{SB+15}"); e("s_nop 1")
    for m in pv(OB, Vb[63 & 1], PB): e(m)
    e(f"v_subrev_u32 v{V_V}, {32*1280}, v{V_V}")
    e(f"v_mul_u32_u24 v{V_T}, 15, v{V_KRI}"); e(f"v_sub_u32 v{V_KR}, v{V_KR}, v{V_T}")

def reducer_loads(k):
    e = k.e
    t = V_T+7
    e(f"v_mbcnt_lo_u32_b32 v{t}, -1, 0"); e(f"v_mbcnt_hi_u32_b32 v{t}, -1, v{t}"); e(f"v_mul_u32_u24 v{t}, 12, v{t}")
    for p in range(16):
        e(f"s_add_u32 s{S_T}, s{S_RED}, {p*PART_FC}")
        for n in range(3):
            i = p*3 + n
            dst = vr(RD + 4*i, 3) if i < 36 else ar(RDA + 4*(i-36), 3)
            k.vmem(f"buffer_load_dwordx3 {dst}, v{t}, s[{R_WS}:{R_WS+3}], s{S_T} offen offset:{n*768} sc1", "red")

def epilogue(k):
    e = k.e
    T = V_T
    e("s_nop 7"); e("s_nop 3")
    for t, O in enumerate((OA, OB)):
        e(f"v_accvgpr_read_b32 v{T+t}, a{O+10}")
    for t in range(2): e(f"v_mov_b32 v{T+2+t}, v{T+t}")
    e("s_nop 1")
    for t in range(2): e(f"v_permlane32_swap_b32 v{T+t}, v{T+2+t}")
    e(f"s_mov_b32 s{S_T}, {fbits(2.0**32)}")
    e(f"v_cmp_ngt_f32 vcc, s{S_T}, v{T}"); e("s_nop 3"); e(f"s_mov_b64 s[{S_T+2}:{S_T+3}], vcc")
    e(f"v_cmp_ngt_f32 vcc, s{S_T}, v{T+1}"); e("s_nop 3"); e(f"s_or_b64 s[{S_T+2}:{S_T+3}], s[{S_T+2}:{S_T+3}], vcc")
    e(f"s_cmp_eq_u64 s[{S_T+2}:{S_T+3}], 0"); e("s_cbranch_scc1 L_attn_ok")
    e(f"s_cmp_lg_u32 s{S_MODE}, 0"); e("s_cbranch_scc1 L_attn_ok")
    e("s_branch L_attn_fallback")
    k.label("L_attn_ok")
    L = T+4
    e(f"v_mbcnt_lo_u32_b32 v{L}, -1, 0"); e(f"v_mbcnt_hi_u32_b32 v{L}, -1, v{L}")
    e(f"v_and_b32 v{L+1}, 31, v{L}"); e(f"v_lshrrev_b32 v{L+2}, 5, v{L}")
    e(f"v_lshlrev_b32 v{L+3}, 5, v{L+1}"); e(f"v_lshl_add_u32 v{L+3}, v{L+2}, 4, v{L+3}")
    e(f"v_lshlrev_b32 v{L+1}, 7, v{L+1}"); e(f"v_lshl_or_b32 v{L+1}, v{L+2}, 31, v{L+1}")
    for t, (O, S) in enumerate(((OA, SA), (OB, SB))):
        e(f"v_rcp_f32 v{T+t}, v{T+t}")
        for i in range(10): e(f"v_accvgpr_read_b32 v{S+i}, a{O+i}")
        for i in range(10): e(f"v_mul_f32 v{S+i}, v{S+i}, v{T+t}")
        P = PA if t == 0 else PB
        for i in range(4): e(f"v_cvt_pk_bf16_f32 v{P+i}, v{S+2*i}, v{S+2*i+1}")
        e(f"v_cvt_pk_bf16_f32 v{P+4}, v{S+8}, v{S+9}")
        e("s_nop 0")
        e(f"v_permlane32_swap_b32 v{P}, v{P+2}"); e(f"v_permlane32_swap_b32 v{P+1}, v{P+3}")
        k.vmem(f"buffer_store_dwordx4 {vr(P,4)}, v{L+3}, s[{R_WS}:{R_WS+3}], s{S_OMO} offen offset:{1024*t}", "ost")
        e(f"s_add_u32 s{S_T}, s{S_ORO}, {4096*t}")
        k.vmem(f"buffer_store_dword v{P+4}, v{L+1}, s[{R_WS}:{R_WS+3}], s{S_T} offen", "ost")

def reduce_sum(k):
    e = k.e
    for i in range(18): e(f"v_mov_b32 v{RACC+i}, 0")
    k.wait_vm("red")
    for p in range(16):
        if p == 12:
            for i in range(12):
                for c in range(3): e(f"v_accvgpr_read_b32 v{RD+4*i+c}, a{RDA+4*i+c}")
        for n in range(3):
            i = (p if p < 12 else p-12)*3 + n
            for c in range(3):
                e(f"v_dot2c_f32_bf16 v{RACC+6*n+2*c}, s{S_C0}, v{RD+4*i+c}")
            for c in range(3):
                e(f"v_dot2c_f32_bf16 v{RACC+6*n+2*c+1}, s{S_C1}, v{RD+4*i+c}")
    t = V_T+7
    e(f"v_mbcnt_lo_u32_b32 v{t}, -1, 0"); e(f"v_mbcnt_hi_u32_b32 v{t}, -1, v{t}"); e(f"v_mul_u32_u24 v{t}, 24, v{t}")
    e("s_nop 1")
    for n in range(3):
        k.vmem(f"buffer_store_dwordx4 {vr(RACC+6*n,4)}, v{t}, s[{R_WS}:{R_WS+3}], s{S_RO} offen offset:{n*1536}", "rst")
        k.vmem(f"buffer_store_dwordx2 {vr(RACC+6*n+4,2)}, v{t}, s[{R_WS}:{R_WS+3}], s{S_RO} offen offset:{n*1536+16}", "rst")

def fallback(k):
    e = k.e
    k.label("L_attn_fallback")
    e(f"s_mov_b32 s{S_MODE}, 1")
    build_qv(k, False)
    e(f"v_mov_b32 v{V_MA}, 0xff800000"); e(f"v_mov_b32 v{V_MB}, 0xff800000")
    A0, A1, A2 = V_T+5, V_T+6, V_T+7
    e(f"v_mov_b32 v{A0}, v{V_KM}"); e(f"v_mov_b32 v{A1}, v{V_KR}")
    e(f"s_mov_b32 s{S_T}, 16")
    k.label("L_fb_loop")
    e(f"ds_read_b128 {ar(KRb[0],4)}, v{A1}")
    for b in range(4):
        e(f"ds_read_b128 {ar(KMb[0],4)}, v{A0} offset:{b*1024}")
        e("s_waitcnt lgkmcnt(0)")
        for m in qk(SA, KMb[0], KRb[0], QA, QVA, b) + qk(SB, KMb[0], KRb[0], QB_, QVB, b): e(m)
        e("s_nop 7"); e("s_nop 3")
        for S, Mx in ((SA, V_MA), (SB, V_MB)):
            for i in range(0, 16, 2): e(f"v_max3_f32 v{Mx}, v{Mx}, v{S+i}, v{S+i+1}")
    e(f"v_add_u32 v{A0}, 4096, v{A0}"); e(f"v_add_u32 v{A1}, v{A1}, v{V_KRI}")
    e(f"s_sub_u32 s{S_T}, s{S_T}, 1"); e(f"s_cmp_lg_u32 s{S_T}, 0"); e("s_cbranch_scc1 L_fb_loop")
    half_max(k, V_MA, V_T); half_max(k, V_MB, V_T)
    pack_negm(k, V_MA, V_MA, V_T); pack_negm(k, V_MB, V_MB, V_T)
    build_qv(k, True)
    e(f"ds_read_b128 {ar(KMb[0],4)}, v{V_KM}"); e(f"ds_read_b128 {ar(KRb[0],4)}, v{V_KR}")
    e("s_waitcnt lgkmcnt(0)")
    e("s_branch L_attn_main")

def partial_convert(k):
    e = k.e
    tb = SA
    for dt in range(36):
        pk = RD + 4*dt
        t = tb + 8*(dt % 2)
        for rt in range(2):
            i0 = 8*dt + 4*rt
            if i0 < 256:
                for i in range(4): e(f"v_accvgpr_read_b32 v{t+4*rt+i}, a{i0+i}")
        for rt in range(2):
            i0 = 8*dt + 4*rt
            src = t + 4*rt if i0 < 256 else la.OUTV + i0 - 256
            e(f"v_cvt_pk_bf16_f32 v{pk+2*rt}, v{src}, v{src+1}")
            e(f"v_cvt_pk_bf16_f32 v{pk+2*rt+1}, v{src+2}, v{src+3}")

def attention_phase(k):
    e = k.e
    setup_scalars(k)
    L = V_L
    e(f"v_mov_b32 v{V_ZERO}, 0")
    e(f"v_mbcnt_lo_u32_b32 v{L}, -1, 0"); e(f"v_mbcnt_hi_u32_b32 v{L}, -1, v{L}")
    setup_vec(k, L)
    e(f"v_lshlrev_b32 v{V_PL}, 4, v{L}")
    e(f"v_mov_b32 v{V_SIGD}, 1"); e(f"v_mov_b32 v{V_SIGO}, 0x80000000")
    e(f"v_cmp_eq_u32 vcc, 0, v{L}"); e(f"s_cmp_eq_u32 s{S_W}, 0"); e("s_nop 1"); e(f"s_cselect_b64 s[{S_T}:{S_T+1}], vcc, 0")
    e(f"v_cndmask_b32 v{V_SIGO}, v{V_SIGO}, v{V_ZERO}, s[{S_T}:{S_T+1}]")
    poll_check(k, "poll1", "0", 256, "qkv", la.V_POLL1, V_SIGO)
    e("s_barrier")
    kv_dma(k, 0); q_loads(k, L); kv_dma(k, 1)
    stamp(k, "kv_iss")
    partial_convert(k)
    stamp(k, "pst")
    kv_dma(k, 2); kv_dma(k, 3)
    e(f"v_mov_b32 v{V_T}, {LDS_ONE}")
    for i in range(4): e(f"v_mov_b32 v{SA+i}, 0x3f803f80")
    k.lds(f"ds_write_b128 v{V_T}, {vr(SA,4)}", "one")
    k.wait_ds("one")
    k.wait_vm("q")
    e("s_barrier")
    first_max(k)
    stamp(k, "attn0")
    main_loop(k)
    stamp(k, "attn1")
    epilogue(k)
    stamp(k, "epi")
    reduce_sum(k)
    e("s_waitcnt vmcnt(0)")
    stamp(k, "end")
    la.stamp_dump(k)
    e("s_branch L_la_end")
    fallback(k)
```

```python
import re

def vr(b, n=1):
    return f"v{b}" if n == 1 else f"v[{b}:{b+n-1}]"
def ar(b, n=1):
    return f"a{b}" if n == 1 else f"a[{b}:{b+n-1}]"
def sr(b, n=1):
    return f"s{b}" if n == 1 else f"s[{b}:{b+n-1}]"

class K:
    def __init__(self):
        self.lines = []
        self.vm = []
        self.ds = []
    def e(self, s):
        self.lines.append(s)
    def c(self, s):
        self.lines.append("; " + s)
    def label(self, s):
        self.lines.append(s + ":")
    def vmem(self, s, tag=None):
        self.lines.append(s); self.vm.append(tag)
    def lds(self, s, tag=None):
        self.lines.append(s); self.ds.append(tag)
    def vm_n(self, tag):
        idx = [i for i, t in enumerate(self.vm) if t == tag]
        assert idx, f"no vm op tagged {tag}"
        return len(self.vm) - 1 - idx[-1]
    def ds_n(self, tag):
        idx = [i for i, t in enumerate(self.ds) if t == tag]
        assert idx, f"no ds op tagged {tag}"
        return len(self.ds) - 1 - idx[-1]
    def wait_vm(self, tag, extra=""):
        n = self.vm_n(tag)
        if n > 63: n = 63
        assert self.vm_n(tag) <= 63, f"vm wait {tag} needs {self.vm_n(tag)}"
        self.e(f"s_waitcnt vmcnt({n})")
    def wait_ds(self, tag):
        n = self.ds_n(tag)
        assert n <= 15, f"ds wait {tag} needs {n}"
        self.e(f"s_waitcnt lgkmcnt({n})")
    def wait_all(self):
        self.e("s_waitcnt vmcnt(0) lgkmcnt(0)")
    def item(self, it):
        kind, text = it[0], it[1]
        tag = it[2] if len(it) > 2 else None
        if kind == "vm": self.vmem(text, tag)
        elif kind == "ds": self.lds(text, tag)
        elif kind == "wvm": self.wait_vm(tag)
        elif kind == "wds": self.wait_ds(tag)
        else: self.e(text)
    def text(self):
        return "\n".join(self.lines)

_reg_re = re.compile(r"^(v|a|s)(\d+)$|^(v|a|s)\[(\d+):(\d+)\]$")
def regs_of(op):
    op = op.strip()
    m = _reg_re.match(op)
    if m:
        if m.group(1): return [(m.group(1), int(m.group(2)))]
        return [(m.group(3), i) for i in range(int(m.group(4)), int(m.group(5)) + 1)]
    if op == "vcc": return [("s", "vcc")]
    if op == "exec": return [("s", "exec")]
    if op == "m0": return [("s", "m0")]
    return []
TRANS = ("v_exp_f32", "v_log_f32", "v_rcp_f32", "v_rsq_f32", "v_sqrt_f32", "v_sin_f32", "v_cos_f32")
def parse(line):
    s = line.split(";")[0].strip()
    if not s or s.endswith(":") or s.startswith("."): return None
    parts = s.split(None, 1)
    op = parts[0]
    rest = parts[1] if len(parts) > 1 else ""
    toks = [t.strip() for t in rest.split(",")]
    ops = []
    mods = ""
    for t in toks:
        w = t.split()
        if w:
            ops.append(w[0].lstrip("-").replace("abs(", "").replace(")", "") if not w[0].startswith(("v[", "a[", "s[")) else w[0])
            mods += " " + " ".join(w[1:])
    d = dict(op=op, dst=[], src=[], cls="other", mods=mods, text=s)
    R = lambda i: regs_of(ops[i]) if i < len(ops) else []
    if op.startswith("v_mfma"):
        d["cls"] = "mfma"; d["dst"] = R(0); d["A"] = R(1); d["B"] = R(2); d["C"] = R(3); d["src"] = R(1) + R(2) + R(3)
        d["passes"] = 8 if "32x32" in op else 4
    elif op.startswith("v_cmp"):
        d["cls"] = "valu"; d["dst"] = R(0); d["src"] = R(1) + R(2)
        if op.startswith("v_cmpx"): d["dst"] += [("s", "exec")]
    elif op.startswith(("v_readfirstlane", "v_readlane")):
        d["cls"] = "valu"; d["dst"] = R(0); d["src"] = sum([R(i) for i in range(1, len(ops))], []); d["rl"] = True
    elif op.startswith("v_permlane"):
        d["cls"] = "valu"; d["dst"] = R(0) + R(1); d["src"] = R(0) + R(1); d["perm"] = True
    elif op.startswith("v_"):
        d["cls"] = "valu"; d["dst"] = R(0); d["src"] = sum([R(i) for i in range(1, len(ops))], [])
        if op.startswith(("v_fmac", "v_dot2c", "v_mac", "v_writelane")) : d["src"] += R(0)
        if op.startswith("v_cndmask") and len(ops) == 4: pass
        if op.startswith(("v_add_co", "v_sub_co", "v_addc_co", "v_subb_co")):
            d["dst"] = R(0) + R(1); d["src"] = sum([R(i) for i in range(2, len(ops))], [])
        if any(op.startswith(t) for t in TRANS): d["trans"] = True
        if op.startswith("v_dot"): d["dot"] = True
        if "dpp" in op or "row_" in mods or "quad_perm" in mods: d["dpp"] = True
    elif op.startswith("ds_read") or op.startswith("ds_bpermute") or op.startswith("ds_swizzle"):
        d["cls"] = "ds"; d["dst"] = R(0); d["src"] = sum([R(i) for i in range(1, len(ops))], [])
    elif op.startswith("ds_"):
        d["cls"] = "ds"; d["src"] = sum([R(i) for i in range(len(ops))], [])
    elif op.startswith("buffer_load") or op.startswith("global_load"):
        d["cls"] = "vmem"
        if " lds" in (" " + s + " ").replace(",", " ") and op.startswith("buffer"):
            d["src"] = sum([R(i) for i in range(len(ops))], []) + [("s", "m0")]; d["ldsdma"] = True
        else:
            d["dst"] = R(0); d["src"] = sum([R(i) for i in range(1, len(ops))], [])
    elif op.startswith("buffer_store") or op.startswith("global_store"):
        d["cls"] = "vmem"; d["src"] = sum([R(i) for i in range(len(ops))], [])
        d["store"] = True
        if op.startswith("buffer"): d["data"] = R(0)
        else: d["data"] = R(1)
        d["wide"] = op.endswith(("x3", "x4"))
    elif op.startswith("buffer_atomic") or op.startswith("global_atomic"):
        d["cls"] = "vmem"; d["src"] = sum([R(i) for i in range(len(ops))], [])
        if "sc0" in s: d["dst"] = R(0)
    elif op.startswith("buffer_"):
        d["cls"] = "vmem"
    elif op.startswith("s_load") or op.startswith("s_memtime") or op.startswith("s_memrealtime"):
        d["cls"] = "smem"; d["dst"] = R(0); d["src"] = sum([R(i) for i in range(1, len(ops))], [])
    elif op.startswith(("s_waitcnt", "s_barrier", "s_nop", "s_branch", "s_cbranch", "s_endpgm", "s_setprio", "s_sleep")):
        d["cls"] = "ctl"
        if op == "s_nop": d["nop"] = int(ops[0], 0) + 1
    elif op.startswith("s_cmp"):
        d["cls"] = "salu"; d["src"] = R(0) + R(1)
    elif op.startswith("s_"):
        d["cls"] = "salu"; d["dst"] = R(0); d["src"] = sum([R(i) for i in range(1, len(ops))], [])
        if "saveexec" in op: d["dst"] += [("s", "exec")]
    return d

def check_hazards(lines, name=""):
    ins = []
    for ln, l in enumerate(lines):
        p = parse(l)
        if p: p["ln"] = ln; ins.append(p)
    errs = []
    def states_between(i, j):
        n = 0
        for k in range(i + 1, j): n += ins[k].get("nop", 1)
        return n
    isv = lambda r: r[0] in ("v", "a")
    W = 24
    for j, c in enumerate(ins):
        dist = 0
        for i in range(j - 1, max(-1, j - W - 1), -1):
            p = ins[i]
            need = 0; why = ""
            pd = set(p["dst"]); cs = set(c["src"]); cd = set(c["dst"])
            def req(n, w):
                nonlocal need, why
                if n > need: need, why = n, w
            if p["cls"] == "valu":
                vd = {r for r in pd if isv(r)}; sd = {r for r in pd if r[0] == "s"}
                if c["cls"] == "mfma" and vd & cs: req(2, "VALU write -> MFMA read")
                if c.get("perm") and vd & cs: req(2, "VALU write -> permlane")
                if c.get("rl") and vd & cs: req(1, "VALU write -> readlane")
                if c.get("dpp") and vd & cs: req(2, "VALU write -> DPP")
                if p.get("trans") and c["cls"] == "valu" and not c.get("trans") and vd & cs: req(1, "trans -> VALU use")
                if sd and c["cls"] == "valu" and sd & cs: req(2, "VALU write sgpr -> VALU read")
                if sd and c["cls"] == "vmem" and sd & cs: req(5, "VALU write sgpr -> VMEM read")
                if ("s", "exec") in pd and c["cls"] == "mfma": req(4, "VALU exec write -> MFMA")
                if p.get("dot") and vd & (cs | cd):
                    same_c = c.get("dot") and c["op"] == p["op"] and (vd & cd if c["op"].startswith("v_dot2c") else False)
                    if same_c:
                        pass
                    else: req(3, "DOT result -> other use")
            if p["cls"] == "mfma":
                n = p["passes"]
                if c["cls"] == "mfma":
                    if pd & set(c["C"]):
                        if set(c["C"]) == pd and c["passes"] == n: pass
                        else: req({4: 6, 8: 10}[n], "MFMA D -> MFMA C overlap")
                    if pd & (set(c["A"]) | set(c["B"])): req({4: 8, 8: 12}[n], "MFMA D -> MFMA A/B")
                elif c["cls"] in ("valu", "vmem", "ds"):
                    if pd & (cs | cd): req({4: 8, 8: 12}[n], "MFMA D -> VALU/mem access")
                if c["cls"] == "valu" and set(p["C"]) & cd: req({4: 3, 8: 7}[n], "MFMA C read -> VALU write (WAR)")
            if p["cls"] == "salu" and ("s", "m0") in pd and c.get("ldsdma"): req(1, "M0 write -> LDS DMA")
            if p.get("store") and p.get("wide") and c["cls"] == "valu" and set(p["data"]) & cd: req(2, "wide store data WAR")
            if p.get("store") and p.get("wide") and c["cls"] in ("ds", "vmem", "mfma") and set(p["data"]) & cd: req(1, "wide store data WAR")
            if need:
                have = states_between(i, j)
                if have < need:
                    errs.append(f"{name} line {c['ln']}: '{c['text']}' after line {p['ln']} '{p['text']}': {why} needs {need}, has {have}")
    return errs
```

```python
from common import *

def cost(it):
    return 2 if it[0] == "t" else 1

class Pipe:
    def __init__(self, k, FR, NFR, DIST):
        self.k = k; self.FR = FR; self.NFR = NFR; self.DIST = DIST
        self.frags = []
        self.fill = {}
        self.pre = {}
        self.dma = {}
        self.bar = {}
        self.hook = {}
        self.base = {}
    def add(self, ms, areg, a0, a1):
        self.frags.append(dict(ms=ms, areg=areg, a0=a0, a1=a1)); return len(self.frags)-1
    def n(self): return len(self.frags)
    def spread(self, q, f0, f1):
        gaps = list(range(f0, f1+1)); tot = sum(cost(x) for x in q); budget = tot/len(gaps); gi = 0; used = 0
        for x in q:
            while used >= budget*(gi+1) - 1e-9 and gi < len(gaps)-1: gi += 1
            self.fill.setdefault(gaps[gi], []).append(x); used += cost(x)
    def spread_dma(self, grps, f0, f1, tail=None):
        n = len(grps)
        for i, g in enumerate(grps):
            F = f0 + (i*(f1-f0))//max(1, n-1) if n > 1 else f0
            self.dma.setdefault(F, []).append(g)
        if tail: self.dma.setdefault(f1, []).append(tail)
    def rd_items(self, Fn):
        f = self.frags[Fn]; r = f["areg"]; fr = self.FR + 4*(Fn % self.NFR)
        out = []
        lo, hi = min(f["a0"], f["a1"]), max(f["a0"], f["a1"])
        b = self.base[r]
        if lo < b or hi - b > 65535 - 8:
            nb = lo
            out.append(("vx", f"v_add_u32 v{r}, {(nb - b) & 0xffffffff}, v{r}"))
            self.base[r] = b = nb
        out.append(("ds", f"ds_read_b64_tr_b16 {vr(fr,2)}, v{r} offset:{f['a0']-b}", ("rd", Fn)))
        out.append(("ds", f"ds_read_b64_tr_b16 {vr(fr+2,2)}, v{r} offset:{f['a1']-b}", ("rd", Fn)))
        return out
    def emit(self):
        k = self.k; NF = len(self.frags); D = self.DIST
        def do_bar(Fn):
            for t in self.bar[Fn]: k.wait_vm(t)
            k.e("s_barrier")
        for Fn in range(min(D, NF)):
            if Fn in self.bar: do_bar(Fn)
            for it in self.rd_items(Fn): k.item(it)
        for F in range(NF):
            f = self.frags[F]
            fr = vr(self.FR + 4*(F % self.NFR), 4)
            if F in self.hook: self.hook[F](k)
            for it in self.pre.get(F, []): k.item(it)
            if F % 2 == 0: k.wait_ds(("rd", min(F+1, NF-1)))
            k.e(f["ms"][0].replace("FRAG", fr))
            Fn = F + D
            R = []
            if Fn < NF:
                if Fn in self.bar: do_bar(Fn)
                R = self.rd_items(Fn)
                while R[0][0] == "vx": k.item(R.pop(0))
            L = []
            for grp in self.dma.get(F, []): L += grp
            L += self.fill.get(F, [])
            L2 = []; i = 0
            while i < len(L):
                L2.append(L[i])
                if L[i][0] == "s" and " m0," in L[i][1]:
                    jx = next((x for x in range(i+2, len(L)) if L[x][0] in ("v", "t")), None)
                    if jx is not None and not any(L[y][0] in ("vm", "s", "wvm") for y in range(i+2, jx)):
                        L2.append(L.pop(jx))
                    else:
                        L2.append(("s", "s_nop 0"))
                i += 1
            L = L2
            best = None
            for nr0 in (1, 2, 0):
                if len(R) < nr0: continue
                for cut in range(len(L)+1):
                    c0 = nr0 + sum(cost(x) for x in L[:cut])
                    c1 = (len(R)-nr0) + sum(cost(x) for x in L[cut:]) + (1 if (F % 2 == 1) else 0)
                    key = (max(0, c0-2) + max(0, c1-2), abs(c0-c1))
                    if best is None or key < best[0]: best = (key, nr0, cut)
            _, nr0, cut = best
            for it in R[:nr0]: k.item(it)
            for it in L[:cut]: k.item(it)
            k.e(f["ms"][1].replace("FRAG", fr))
            for it in R[nr0:]: k.item(it)
            for it in L[cut:]: k.item(it)
```

```python
from common import *
from engine import *
from layout import *
import math, struct

S_W, S_RB, S_FC = 3, 4, 5
S_X, S_WQKV, S_WD, S_WG, S_WU, S_DBG, S_WS = 6, 8, 10, 12, 14, 16, 18
R_X, R_Q, R_G, R_U, R_D, R_WS = 20, 24, 28, 32, 36, 40
SO_GU, SO_D, SO_S = 44, 53, 62
S_LB = 71
S_T = 72
R_DBG = 80
S_QKOFF, S_QROFF, S_VOFF, S_POFF = 84, 85, 86, 87
S_T2 = 88
S_QLB, S_QW = 22+68, 23+68
S_PAR = 92
V_RD, V_DGU, V_DD = 0, 1, 2
CA = (3, 5); CB = (4, 6); KK = (7, 8)
T0 = 9
FR, NFR, DIST = 12, 5, 4
X0 = 32
XN = 80
OUTV = 224
SC = 224
RC = (SC, SC+1); RV = SC+2; V_STQK = SC+10; V_STREM = SC+11; V_STV = SC+12; V_STONE = SC+15
PK = SC+16; TB = SC+20; V_LN = SC+28; V_SIG = SC+30
V_DQ = X0+32; VQ_RD = X0+40; VQ_RDR = X0+41
SLOT = 36864
QKS = 7168
def X(k): return X0 + 16*(k % 3)
def xn(s, rt): return XN + 8*s + 4*rt
def outacc(dt, rt):
    i = 8*dt + 4*rt
    return ar(i, 4) if i < 256 else vr(OUTV + i - 256, 4)
A_GELU = -2.0*math.log2(math.e)*math.sqrt(2.0/math.pi)
B_GELU = A_GELU*0.044715
QSCALE = (18.0 ** -0.5)*math.log2(math.e)
def fbits(x): return "0x%08x" % struct.unpack("<I", struct.pack("<f", x))[0]

STAMPS = False
STAMP_REGS = [94, 96, 98, 100, 12, 14, 16]
_stamp_n = [0]
STAMP_SET = None
STAMP_NAMES = []
def stamp(k, name="", real=True):
    if not STAMPS: return
    if STAMP_SET is not None and name not in STAMP_SET: return
    STAMP_NAMES.append(name)
    r = STAMP_REGS[_stamp_n[0]]; _stamp_n[0] += 1
    k.e(f"{'s_memrealtime' if real else 's_memtime'} s[{r}:{r+1}]")
def stamp_dump(k):
    if not STAMPS: return
    e = k.e
    e("s_waitcnt vmcnt(0) lgkmcnt(0)")
    srd(k, 24, f"s{S_WS}", f"s{S_WS+1}", 0x8000000)
    e(f"s_lshl_b32 s{S_T}, s2, 2"); e(f"s_add_u32 s{S_T}, s{S_T}, s{S_W}"); e(f"s_lshl_b32 s{S_T}, s{S_T}, 6"); e(f"s_add_u32 s{S_T}, s{S_T}, 0x6000000")
    e("v_mov_b32 v1, 0")
    for i in range(_stamp_n[0]):
        e(f"v_mov_b32 v2, s{STAMP_REGS[i]}")
        k.vmem(f"buffer_store_dword v2, v1, s[24:27], s{S_T} offen offset:{4*i}", "st")
        e("s_nop 1")
    e("s_waitcnt vmcnt(0)")

def srd(k, r, lo, hi, nrec):
    k.e(f"s_mov_b32 s{r}, {lo}"); k.e(f"s_mov_b32 s{r+1}, {hi}")
    k.e(f"s_mov_b32 s{r+2}, {nrec}"); k.e(f"s_mov_b32 s{r+3}, 0x20000")
def srd_off(k, r, base, soff, total):
    k.e(f"s_add_u32 s{r}, s{base}, s{soff}"); k.e(f"s_addc_u32 s{r+1}, s{base+1}, 0")
    k.e(f"s_sub_u32 s{r+2}, {total}, s{soff}"); k.e(f"s_mov_b32 s{r+3}, 0x20000")
def sel_par(k, dst, even, odd):
    k.e(f"s_mov_b32 s{dst}, {even}")
    if odd != even: k.e(f"s_cselect_b32 s{dst}, {odd}, s{dst}")

MAPFX = 2
QPRE = 3
QSTEP = 2
QLEFT = []
def ids(k):
    e = k.e
    nfx = MAPFX; lg = nfx.bit_length() - 1; ng = 16 // nfx
    e(f"s_and_b32 s{S_T}, s2, 7"); e(f"s_lshr_b32 s{S_T+1}, s2, 3")
    e(f"s_and_b32 s{S_FC}, s{S_T}, {ng-1}"); e(f"s_lshl_b32 s{S_FC}, s{S_FC}, {lg}"); e(f"s_and_b32 s{S_T+2}, s{S_T+1}, {nfx-1}"); e(f"s_add_u32 s{S_FC}, s{S_FC}, s{S_T+2}")
    e(f"s_lshr_b32 s{S_RB}, s{S_T}, {ng.bit_length()-1}"); e(f"s_mul_i32 s{S_RB}, s{S_RB}, {32//nfx}"); e(f"s_lshr_b32 s{S_T+2}, s{S_T+1}, {lg}"); e(f"s_add_u32 s{S_RB}, s{S_RB}, s{S_T+2}")

def prologue(k):
    e = k.e
    e("s_cmp_ge_u32 s2, 256"); e("s_cbranch_scc1 L_la_end")
    stamp(k, "entry")
    e(f"s_load_dwordx2 s[{S_X}:{S_X+1}], s[0:1], 0"); e(f"s_load_dwordx2 s[{S_WQKV}:{S_WQKV+1}], s[0:1], 8")
    e(f"s_load_dwordx4 s[{S_WG}:{S_WG+3}], s[0:1], 32")
    e(f"s_load_dwordx2 s[{S_WD}:{S_WD+1}], s[0:1], 48")
    e(f"s_load_dwordx4 s[{S_DBG}:{S_DBG+3}], s[0:1], 64")
    L = V_LN
    t0, t1, t2, t3 = T0, T0+1, T0+2, FR
    e(f"v_lshrrev_b32 v{t0}, 6, v0"); e(f"v_and_b32 v{L}, 63, v0")
    e(f"v_mov_b32 v{V_LN+1}, v0")
    e(f"v_readfirstlane_b32 s{S_W}, v{t0}")
    ids(k)
    e(f"v_lshrrev_b32 v{t0}, 3, v{L}"); e(f"v_and_b32 v{t1}, 6, v{t0}"); e(f"v_and_b32 v{t2}, 7, v{L}"); e(f"v_xor_b32 v{t1}, v{t1}, v{t2}")
    e(f"v_mul_u32_u24 v{t0}, 1152, v{t0}"); e(f"v_lshl_add_u32 v{t2}, v{t1}, 4, v{t0}")
    e(f"s_lshl_b32 s{S_T}, s{S_RB}, 7"); e(f"s_lshl_b32 s{S_T+1}, s{S_W}, 5"); e(f"s_add_u32 s{S_T}, s{S_T}, s{S_T+1}")
    e(f"s_mul_i32 s{S_T}, s{S_T}, 1152")
    e(f"s_mul_i32 s{S_T+3}, s{S_W}, 36864")
    e("s_waitcnt lgkmcnt(0)")
    srd_off(k, R_X, S_X, S_T, 2048*1152)
    for j in range(9):
        for rg in range(4):
            e(f"s_add_u32 m0, s{S_T+3}, {(rg*9 + j)*1024}"); e(f"s_mov_b32 s{S_T+2}, {rg*8*1152 + 128*j}")
            k.vmem(f"buffer_load_dwordx4 v{t2}, s[{R_X}:{R_X+3}], s{S_T+2} offen lds", ("xd", j))
    e(f"v_and_b32 v{t0}, 7, v{L}"); e(f"v_and_b32 v{t1}, 6, v{t0}"); e(f"v_lshrrev_b32 v{t2}, 4, v{L}"); e(f"v_xor_b32 v{t1}, v{t1}, v{t2}")
    e(f"v_lshlrev_b32 v{t0}, 7, v{t0}"); e(f"v_lshl_add_u32 v{t0}, v{t1}, 4, v{t0}")
    e(f"v_bfe_u32 v{t1}, v{L}, 3, 1"); e(f"v_mul_u32_u24 v{t1}, 9216, v{t1}"); e(f"v_add_u32 v{t0}, v{t0}, v{t1}")
    e(f"v_add_u32 v{V_XR}, s{S_T+3}, v{t0}"); e(f"v_xor_b32 v{V_XR+1}, 64, v{V_XR}")
    stamp(k, "x_iss")
    srd(k, R_Q, f"s{S_WQKV}", f"s{S_WQKV+1}", 576*3456)
    e(f"s_mul_i32 s{S_T}, s{S_FC}, 144"); e(f"s_mul_i32 s{S_T+1}, s{S_FC}, 72"); e(f"s_add_u32 s{S_T+1}, s{S_T+1}, {2304 - 144}")
    a, b, c, d = FR, FR+1, FR+2, FR+3
    for j in range(7):
        e(f"v_add_u32 v{a}, {64*j}, v{L}")
        e(f"v_mul_u32_u24 v{b}, 4682, v{a}"); e(f"v_lshrrev_b32 v{b}, 16, v{b}")
        e(f"v_mul_u32_u24 v{c}, 14, v{b}"); e(f"v_sub_u32 v{a}, v{a}, v{c}")
        e(f"v_and_b32 v{c}, 0x13, v{b}"); e(f"v_bfe_u32 v{d}, v{b}, 2, 1"); e(f"v_lshl_or_b32 v{c}, v{d}, 3, v{c}")
        e(f"v_bfe_u32 v{d}, v{b}, 3, 1"); e(f"v_lshl_or_b32 v{c}, v{d}, 2, v{c}")
        e(f"v_mul_u32_u24 v{c}, 3456, v{c}")
        e(f"v_lshl_add_u32 v{c}, v{a}, 4, v{c}")
        e(f"v_add_u32 v{d}, s{S_T}, v{c}"); e(f"v_add_u32 v{c}, s{S_T+1}, v{c}")
        e(f"v_cmp_gt_u32 vcc, 9, v{a}"); e("s_nop 1"); e(f"v_cndmask_b32 v{V_DQ+j}, v{c}, v{d}, vcc")
    e(f"s_mul_i32 s{S_QLB}, s{S_W}, {QKS}"); e(f"s_mul_i32 s{S_QW}, s{S_W}, {32*3456}")
    e(f"s_lshr_b32 s{S_T+3}, s{S_W}, 1")
    e(f"s_mul_i32 s{S_T}, s{S_T+3}, {16*9216}"); e(f"s_mul_i32 s{S_T+1}, s{S_FC}, 576"); e(f"s_add_u32 s{S_T}, s{S_T}, s{S_T+1}")
    srd_off(k, R_G, S_WG, S_T, 576*9216)
    srd_off(k, R_U, S_WU, S_T, 576*9216)
    e(f"s_and_b32 s{S_T}, s{S_W}, 1"); e(f"s_lshl_b32 s{S_T}, s{S_T}, 4"); e(f"s_lshl_b32 s{S_T+1}, s{S_T+3}, 3")
    e(f"s_add_u32 s{S_T}, s{S_T}, s{S_T+1}"); e(f"s_mul_i32 s{S_T}, s{S_T}, 1152")
    e(f"s_mul_i32 s{S_T+1}, s{S_FC}, 331776"); e(f"s_add_u32 s{S_T}, s{S_T}, s{S_T+1}")
    srd_off(k, R_D, S_WD, S_T, 4608*1152)
    e(f"s_sub_u32 s{R_D}, s{R_D}, 4096"); e(f"s_subb_u32 s{R_D+1}, s{R_D+1}, 0"); e(f"s_add_u32 s{R_D+2}, s{R_D+2}, 4096")
    srd(k, R_WS, f"s{S_WS}", f"s{S_WS+1}", WS_END)
    srd(k, R_DBG, f"s{S_DBG}", f"s{S_DBG+1}", 256)
    e(f"s_and_b32 s{S_PAR}, s{S_FC}, 1")
    e(f"s_bitcmp1_b32 s{S_W}, 0")
    for n in range(9):
        rows = lambda idx: 32*(idx >> 1) + 4*(idx & 1)
        sel_par(k, SO_GU+n, rows(n)*9216 - (n%4)*1024, rows(9+n)*9216 - (n%4)*1024)
        sel_par(k, SO_S+n, 32*n*9216 - (n%4)*1024, (288+32*n)*9216 - (n%4)*1024)
        e(f"s_mov_b32 s{SO_D+n}, {n*128 - (n%4)*1024 + 4096}")
    e(f"s_mul_i32 s{S_LB}, s{S_W}, 9216")
    e(f"v_and_b32 v{t0}, 31, v{L}"); e(f"v_lshlrev_b32 v{t0}, 3, v{t0}")
    e(f"v_lshrrev_b32 v{t1}, 5, v{L}"); e(f"v_mul_u32_u24 v{t1}, 18432, v{t1}")
    e(f"v_add_u32 v{V_RD}, v{t0}, v{t1}")
    e(f"v_bfe_u32 v{t0}, v{L}, 3, 1"); e(f"v_lshlrev_b32 v{t0}, 3, v{t0}"); e(f"v_bfe_u32 v{t1}, v{L}, 1, 2"); e(f"v_add_u32 v{t0}, v{t0}, v{t1}")
    e(f"v_mul_u32_u24 v{t0}, 9216, v{t0}")
    e(f"v_lshrrev_b32 v{t1}, 4, v{L}"); e(f"v_lshl_add_u32 v{t0}, v{t1}, 5, v{t0}")
    e(f"v_and_b32 v{t1}, 1, v{L}"); e(f"v_lshl_add_u32 v{t0}, v{t1}, 4, v{t0}")
    e(f"s_lshl_b32 s{S_T}, s{S_PAR}, 6"); e(f"v_add_u32 v{V_DGU}, s{S_T}, v{t0}")
    e(f"v_bfe_u32 v{t0}, v{L}, 1, 3"); e(f"v_mul_u32_u24 v{t0}, 1152, v{t0}")
    e(f"v_lshrrev_b32 v{t2}, 4, v{L}"); e(f"v_lshl_add_u32 v{t0}, v{t2}, 5, v{t0}")
    e(f"v_lshl_add_u32 v{t0}, v{t1}, 4, v{t0}")
    e(f"s_mul_i32 s{S_T}, s{S_PAR}, {SLOT}"); e(f"v_add_u32 v{V_DD}, s{S_T}, v{t0}")
    e(f"v_lshrrev_b32 v{t0}, 5, v{L}"); e(f"v_lshlrev_b32 v{t0}, 4, v{t0}")
    e(f"v_bfe_u32 v{t1}, v{L}, 2, 3"); e(f"v_add_u32 v{t0}, v{t0}, v{t1}")
    e(f"v_mul_u32_u24 v{t0}, 224, v{t0}")
    e(f"v_and_b32 v{t1}, 3, v{L}"); e(f"v_lshl_add_u32 v{VQ_RD}, v{t1}, 3, v{t0}")
    e(f"v_bfe_u32 v{t1}, v{L}, 1, 1"); e(f"v_mul_u32_u24 v{t1}, 72, v{t1}"); e(f"v_add_u32 v{t1}, 32, v{t1}"); e(f"v_add_u32 v{VQ_RDR}, v{t0}, v{t1}")
    q_consts(k)

S_QS = 6
V_DQ4 = X0+42
V_XR = X0+46
def q_consts(k):
    e = k.e
    for u in range(4): e(f"s_add_u32 s{S_QS+u}, s{S_QW}, {u*4*32*3456}")
    e(f"s_lshr_b32 s{S_QS+5}, s{S_W}, 1"); e(f"s_mul_i32 s{S_QS+4}, s{S_QS+5}, {32*3456}"); e(f"s_add_u32 s{S_QS+4}, s{S_QS+4}, {16*32*3456}")
    e(f"s_mul_i32 s{S_QS+5}, s{S_QS+5}, {QKS}")
    e(f"s_and_b32 s{S_T}, s{S_W}, 1"); e(f"s_mul_i32 s{S_T+1}, s{S_T}, 3072"); e(f"s_add_u32 s{S_QS+5}, s{S_QS+5}, s{S_T+1}")
    e(f"s_cmp_eq_u32 s{S_T}, 1"); e(f"s_cselect_b64 vcc, -1, 0")
    for jj in range(4): e(f"v_cndmask_b32 v{V_DQ4+jj}, v{V_DQ+jj}, v{V_DQ+3+jj}, vcc")
def q_dma_items(u):
    if u < 4:
        return [[("s", f"s_add_u32 m0, s{S_QLB}, {u*4*QKS + j*1024}"),
                 ("vm", f"buffer_load_dwordx4 v{V_DQ+j}, s[{R_Q}:{R_Q+3}], s{S_QS+u} offen lds", ("qd", u))] for j in range(7)]
    return [[("s", f"s_add_u32 m0, s{S_QS+5}, {16*QKS + j*1024}"),
             ("vm", f"buffer_load_dwordx4 v{V_DQ4+j}, s[{R_Q}:{R_Q+3}], s{S_QS+u} offen lds", ("qd", u))] for j in range(4)]
def emit_grp(k, grp):
    for it in grp:
        k.item(it)
        if it[0] == "s" and " m0," in it[1]: k.e("s_nop 0")

def xreduce(k, regs, tmp):
    e = k.e
    for op in ("v_permlane32_swap_b32", "v_permlane16_swap_b32"):
        for i, r in enumerate(regs): e(f"v_mov_b32 v{tmp+i}, v{r}")
        e("s_nop 1")
        for i, r in enumerate(regs): e(f"{op} v{r}, v{tmp+i}")
        e("s_nop 1")
        for i, r in enumerate(regs): e(f"v_add_f32 v{r}, v{r}, v{tmp+i}")

def layernorm(k):
    e = k.e
    L = V_LN
    sm = (X0, X0+1); sq = (X0+2, X0+3)
    AC = X0+16
    for r in range(16): e(f"v_mov_b32 v{AC+r}, 0")
    e(f"s_mov_b32 s{S_T}, 0x3f803f80")
    def x_reads(j):
        for rt in range(2):
            for s in (2*j, 2*j+1):
                k.lds(f"ds_read_b128 {vr(xn(s,rt),4)}, v{V_XR + (s & 1)} offset:{rt*18432 + j*1024}", ("xr", s, rt))
    def pass1(j):
        for rt in range(2):
            for s in (2*j, 2*j+1):
                k.wait_ds(("xr", s, rt))
                for i in range(4):
                    e(f"v_dot2c_f32_bf16 v{AC+8*rt+i}, s{S_T}, v{xn(s,rt)+i}")
                for i in range(4):
                    R = xn(s, rt) + i
                    e(f"v_dot2c_f32_bf16 v{AC+8*rt+4+i}, v{R}, v{R}")
    for j in range(9):
        k.wait_vm(("xd", j)); x_reads(j)
        if j >= 2: pass1(j-2)
    k.e("s_waitcnt lgkmcnt(0)"); k.e("s_barrier")
    q01 = q_dma_items(0) + q_dma_items(1)
    for _ in range(QPRE): emit_grp(k, q01.pop(0))
    pass1(7); pass1(8)
    e("s_nop 2")
    for rt in range(2):
        for q in range(2):
            b = AC + 8*rt + 4*q
            e(f"v_add_f32 v{b}, v{b}, v{b+1}"); e(f"v_add_f32 v{b+2}, v{b+2}, v{b+3}")
    for rt in range(2):
        e(f"v_add_f32 v{sm[rt]}, v{AC+8*rt}, v{AC+8*rt+2}"); e(f"v_add_f32 v{sq[rt]}, v{AC+8*rt+4}, v{AC+8*rt+6}")
    stamp(k, "ln1")
    xreduce(k, [sm[0], sm[1], sq[0], sq[1]], X0+4)
    SLO = (X0+8, X0+9); SHI = (X0+10, X0+11); NMS = (X0+12, X0+13); RP = (X0+14, X0+15)
    t = X0+16
    e(f"s_mov_b32 s{S_T}, {fbits(1.0/576)}")
    e(f"s_mov_b32 s{S_T+1}, 0x7f800000"); e(f"s_mov_b32 s{S_T+2}, 0x007fffff")
    for rt in range(2):
        m, q = sm[rt], sq[rt]
        e(f"v_mul_f32 v{m}, s{S_T}, v{m}"); e(f"v_mul_f32 v{q}, s{S_T}, v{q}")
        e(f"v_fma_f32 v{q}, -v{m}, v{m}, v{q}"); e(f"v_max_f32 v{q}, 0, v{q}")
        e(f"v_add_f32 v{q}, {fbits(1e-5)}, v{q}"); e(f"v_rsq_f32 v{q}, v{q}"); e("s_nop 0")
        e(f"v_and_b32 v{SHI[rt]}, s{S_T+1}, v{q}"); e(f"v_lshrrev_b32 v{SLO[rt]}, 16, v{SHI[rt]}")
        e(f"v_and_b32 v{RP[rt]}, s{S_T+2}, v{q}"); e(f"v_or_b32 v{RP[rt]}, 1.0, v{RP[rt]}")
        e(f"v_mul_f32 v{NMS[rt]}, v{m}, v{SHI[rt]}"); e(f"v_sub_f32 v{NMS[rt]}, 0, v{NMS[rt]}")
        e(f"v_mul_f32 v{t}, v{RP[rt]}, v{RP[rt]}"); e(f"v_rcp_f32 v{KK[rt]}, v{t}")
        e(f"v_mul_f32 v{CA[rt]}, {fbits(A_GELU)}, v{RP[rt]}")
        e(f"v_mul_f32 v{t}, v{t}, v{RP[rt]}"); e(f"v_mul_f32 v{CB[rt]}, {fbits(B_GELU)}, v{t}")
    e(f"s_cmp_lt_u32 s{S_FC}, 8"); e(f"s_cselect_b32 s{S_T}, {fbits(QSCALE)}, 1.0")
    for rt in range(2): e(f"v_mul_f32 v{RC[rt]}, s{S_T}, v{RP[rt]}")
    e(f"v_lshrrev_b32 v{t}, 4, v{L}"); e(f"v_lshlrev_b32 v{t}, 4, v{t}")
    for i in range(4): e(f"v_add_u32 v{t+1+i}, {4*i}, v{t}")
    for rt in range(2):
        for i in range(4):
            k.lds(f"ds_bpermute_b32 v{RV+4*rt+i}, v{t+1+i}, v{RP[rt]}", "bp")
    tt = t+8
    for s in range(18):
        if q01 and s % QSTEP == 0: emit_grp(k, q01.pop(0))
        for rt in range(2):
            for i in range(4):
                R = xn(s, rt) + i
                e(f"v_dot2_f32_bf16 v{tt+2*i}, v{R}, v{SLO[rt]}, v{NMS[rt]}")
                e(f"v_dot2_f32_bf16 v{tt+2*i+1}, v{R}, v{SHI[rt]}, v{NMS[rt]}")
            for i in range(4):
                R = xn(s, rt) + i
                e(f"v_cvt_pk_bf16_f32 v{R}, v{tt+2*i}, v{tt+2*i+1}")
    global QLEFT
    QLEFT = q01
    k.wait_ds("bp")

def store_addr_setup(k):
    e = k.e
    L = V_LN; t0, t1, t2 = T0, T0+1, T0+2
    e(f"s_lshl_b32 s{S_T}, s{S_RB}, 2"); e(f"s_add_u32 s{S_T}, s{S_T}, s{S_W}")
    e(f"s_lshl_b32 s{S_QKOFF}, s{S_FC}, 18"); e(f"s_lshl_b32 s{S_T+1}, s{S_T}, 10"); e(f"s_add_u32 s{S_QKOFF}, s{S_QKOFF}, s{S_T+1}")
    if QM: e(f"s_add_u32 s{S_QKOFF}, s{S_QKOFF}, {QM}")
    e(f"s_lshl_b32 s{S_QROFF}, s{S_FC}, 15"); e(f"s_lshl_b32 s{S_T+1}, s{S_T}, 7"); e(f"s_add_u32 s{S_QROFF}, s{S_QROFF}, s{S_T+1}")
    e(f"s_add_u32 s{S_QROFF}, s{S_QROFF}, {QR}")
    e(f"s_mul_i32 s{S_VOFF}, s{S_FC}, {2*VT_HEAD}"); e(f"s_mul_i32 s{S_T+1}, s{S_T}, 1280"); e(f"s_add_u32 s{S_VOFF}, s{S_VOFF}, s{S_T+1}")
    e(f"s_add_u32 s{S_VOFF}, s{S_VOFF}, {VT}")
    e(f"s_mul_i32 s{S_POFF}, s{S_FC}, {PART_FC}"); e(f"s_mul_i32 s{S_T+1}, s{S_T}, {36*1024}"); e(f"s_add_u32 s{S_POFF}, s{S_POFF}, s{S_T+1}")
    e(f"s_add_u32 s{S_POFF}, s{S_POFF}, {PART}")
    e(f"v_lshrrev_b32 v{t0}, 5, v{L}"); e(f"v_lshlrev_b32 v{t0}, 9, v{t0}")
    e(f"v_and_b32 v{t1}, 31, v{L}"); e(f"v_lshl_add_u32 v{V_STQK}, v{t1}, 4, v{t0}")
    e(f"v_lshrrev_b32 v{t0}, 5, v{L}"); e(f"v_lshlrev_b32 v{t0}, 14, v{t0}")
    e(f"v_and_b32 v{t1}, 15, v{L}"); e(f"v_lshl_add_u32 v{t0}, v{t1}, 2, v{t0}")
    e(f"v_bfe_u32 v{t1}, v{L}, 4, 1"); e(f"v_lshl_or_b32 v{V_STREM}, v{t1}, 31, v{t0}")
    for T in range(3):
        e(f"v_and_b32 v{t0}, 15, v{L}"); e(f"v_add_u32 v{t0}, {16*T}, v{t0}")
        e(f"v_lshlrev_b32 v{t1}, 6, v{t0}"); e(f"v_add_u32 v{t2}, {VT_HEAD - 18*64}, v{t1}")
        e(f"v_cmp_gt_u32 vcc, 18, v{t0}"); e("s_nop 1"); e(f"v_cndmask_b32 v{t1}, v{t2}, v{t1}, vcc")
        e(f"v_mov_b32 v{t2}, 0x80000000")
        e(f"v_cmp_gt_u32 vcc, 36, v{t0}"); e("s_nop 1"); e(f"v_cndmask_b32 v{t1}, v{t2}, v{t1}, vcc")
        e(f"v_lshrrev_b32 v{t0}, 4, v{L}"); e(f"v_lshl_add_u32 v{V_STV+T}, v{t0}, 4, v{t1}")
    e(f"v_bfe_u32 v{t0}, v{L}, 3, 1"); e(f"v_mul_u32_u24 v{t0}, {VT_HEAD}, v{t0}")
    e(f"v_bfe_u32 v{t1}, v{L}, 2, 1"); e(f"v_add_u32 v{t1}, 18, v{t1}"); e(f"v_lshl_add_u32 v{t0}, v{t1}, 6, v{t0}")
    e(f"v_and_b32 v{t1}, 3, v{L}"); e(f"v_lshl_add_u32 v{t0}, v{t1}, 4, v{t0}")
    e(f"v_mov_b32 v{t2}, 0x80000000"); e(f"v_cmp_gt_u32 vcc, 16, v{L}"); e("s_nop 1"); e(f"v_cndmask_b32 v{V_STONE}, v{t2}, v{t0}, vcc")
    e(f"v_bfe_u32 v{t1}, v{L}, 2, 1"); e(f"v_cmp_eq_u32 vcc, 0, v{t1}"); e(f"v_mov_b32 v{t0}, 0x3f803f80"); e(f"v_mov_b32 v{t1}, 0")
    for i in range(4): e(f"v_cndmask_b32 v{PK+i}, v{t1}, v{t0}, vcc")
    k.vmem(f"buffer_store_dwordx4 {vr(PK,4)}, v{V_STONE}, s[{R_WS}:{R_WS+3}], s{S_VOFF} offen sc1", "qkvst")
    e(f"v_mov_b32 v{V_SIG}, 1"); e(f"v_mov_b32 v{t2}, 0x80000000"); e(f"v_mov_b32 v{t1}, 0")
    e(f"v_cmp_eq_u32 vcc, 0, v{V_LN+1}"); e("s_nop 1"); e(f"v_cndmask_b32 v{V_SIG+1}, v{t2}, v{t1}, vcc")

def acc_read(T):
    return [("v", f"v_accvgpr_read_b32 v{TB+4*rt+i}, a{8*T+4*rt+i}") for rt in range(2) for i in range(4)]
def pack4():
    return [("v", f"v_cvt_pk_bf16_f32 v{PK+2*rt+h}, v{TB+4*rt+2*h}, v{TB+4*rt+2*h+1}") for rt in range(2) for h in range(2)]
def qkv_epilogue_items():
    it = []
    for T in range(4):
        it += acc_read(T)
        it += [("v", f"v_mul_f32 v{TB+4*rt+i}, v{TB+4*rt+i}, v{RC[rt]}") for rt in range(2) for i in range(4)]
        it += pack4()
        it += [("s", f"s_add_u32 s{S_T2}, s{S_QKOFF}, {T*65536}"), ("s", "s_nop 0"),
               ("v", f"v_permlane16_swap_b32 v{PK}, v{PK+2}"), ("v", f"v_permlane16_swap_b32 v{PK+1}, v{PK+3}"),
               ("vm", f"buffer_store_dwordx4 {vr(PK,4)}, v{V_STQK}, s[{R_WS}:{R_WS+3}], s{S_T2} offen sc1", "qkvst")]
    it += acc_read(4)
    it += [("v", f"v_mul_f32 v{TB+4*rt+i}, v{TB+4*rt+i}, v{RC[rt]}") for rt in range(2) for i in range(4)]
    it += pack4()
    it.append(("s", f"s_add_u32 s{S_T2}, s{S_QROFF}, 8192"))
    for rt in range(2):
        it.append(("vm", f"buffer_store_dword v{PK+2*rt}, v{V_STREM}, s[{R_WS}:{R_WS+3}], s{S_QROFF} offen offset:{64*rt} sc1", "qkvst"))
        it.append(("vm", f"buffer_store_dword v{PK+2*rt+1}, v{V_STREM}, s[{R_WS}:{R_WS+3}], s{S_T2} offen offset:{64*rt} sc1", "qkvst"))
    for Tv in range(3):
        it += acc_read(5+Tv)
        it += [("v", f"v_mul_f32 v{TB+4*rt+i}, v{TB+4*rt+i}, v{RV+4*rt+i}") for rt in range(2) for i in range(4)]
        it += pack4()
        it.append(("vm", f"buffer_store_dwordx4 {vr(PK,4)}, v{V_STV+Tv}, s[{R_WS}:{R_WS+3}], s{S_VOFF} offen sc1", "qkvst"))
    return it

def gelu_core(Xg, ntemp=2):
    def one(g, t, rt):
        return [("v", f"v_mul_f32 v{t}, v{g}, v{g}"), ("v", f"v_fma_f32 v{t}, v{t}, v{CB[rt]}, v{CA[rt]}"),
                ("v", f"v_mul_f32 v{t}, v{t}, v{g}"), ("t", f"v_exp_f32 v{t}, v{t}"),
                ("v", f"v_fma_f32 v{t}, v{t}, v{KK[rt]}, v{KK[rt]}"), ("t", f"v_rcp_f32 v{t}, v{t}"),
                ("v", f"v_mul_f32 v{g}, v{g}, v{t}")]
    out = []
    for i in range(0, 16, ntemp):
        ls = [one(Xg+i+j, T0+j, (i+j) >> 3) for j in range(ntemp)]
        for xs in zip(*ls): out += list(xs)
    return out
def h_pair(Xg, Xu, rt, p):
    e0 = 8*rt + 2*p
    return [("v", f"v_mul_f32 v{Xg+e0}, v{Xg+e0}, v{Xu+e0}"), ("v", f"v_mul_f32 v{Xg+e0+1}, v{Xg+e0+1}, v{Xu+e0+1}"),
            ("v", f"v_cvt_pk_bf16_f32 v{Xu+8*rt+p}, v{Xg+e0}, v{Xg+e0+1}")]
def h_items(Xg, Xu):
    return sum([h_pair(Xg, Xu, rt, p) for rt in range(2) for p in range(4)], [])
def ileave2(a, b):
    out = []
    for x, y in zip(a, b): out += [x, y]
    return out

def mlp_dma(unit, kind):
    slot = (unit % 4)*SLOT
    r, so, vo = {"G": (R_G, SO_GU, V_DGU), "U": (R_U, SO_GU, V_DGU), "GS": (R_G, SO_S, V_DGS), "US": (R_U, SO_S, V_DGS), "D": (R_D, SO_D, V_DD)}[kind]
    out = []
    for n in range(9):
        grp = []
        if n % 4 == 0: grp.append(("s", f"s_add_u32 m0, s{S_LB}, {slot + n*1024}"))
        grp.append(("vm", f"buffer_load_dwordx4 v{vo}, s[{r}:{r+3}], s{so+n} offen offset:{(n%4)*1024} lds", ("dma", unit)))
        out.append(grp)
    return out

V_DGS = T0+2
V_POLL1 = T0
def single_setup(k):
    e = k.e; L = V_LN; t0, t1 = T0, T0+1
    e(f"v_bfe_u32 v{t0}, v{L}, 3, 1"); e(f"v_lshlrev_b32 v{t0}, 3, v{t0}")
    e(f"v_lshrrev_b32 v{t1}, 5, v{L}"); e(f"v_lshl_add_u32 v{t0}, v{t1}, 2, v{t0}")
    e(f"v_bfe_u32 v{t1}, v{L}, 1, 2"); e(f"v_add_u32 v{t0}, v{t0}, v{t1}"); e(f"v_mul_u32_u24 v{t0}, 9216, v{t0}")
    e(f"v_bfe_u32 v{t1}, v{L}, 4, 1"); e(f"v_lshl_add_u32 v{t0}, v{t1}, 5, v{t0}")
    e(f"v_and_b32 v{t1}, 1, v{L}"); e(f"v_lshl_add_u32 v{t0}, v{t1}, 4, v{t0}")
    e(f"s_cmp_eq_u32 s{S_PAR}, 1"); e(f"s_cselect_b32 s{S_T}, 0, 512"); e(f"v_add_u32 v{V_DGS}, s{S_T}, v{t0}")
    e(f"s_mov_b32 s{S_DDL}, {SLOT}"); e(f"s_cselect_b32 s{S_DDL}, {(-8*SLOT) & 0xffffffff}, s{S_DDL}")

def gemm_phases(k):
    P = Pipe(k, FR, NFR, DIST)
    P.base = {V_RD: 0, VQ_RD: 0, VQ_RDR: 0}
    toff = [0, 40, 72, 112, 0, 144, 176, 208]
    for s in range(18):
        for T in range(8):
            ms = []
            for rt in range(2):
                a = ar(8*T + 4*rt, 4); c = a if s > 0 else "0"
                if T >= 5: ms.append(f"v_mfma_f32_16x16x32_bf16 {a}, {vr(xn(s,rt),4)}, FRAG, {c}")
                else:      ms.append(f"v_mfma_f32_16x16x32_bf16 {a}, FRAG, {vr(xn(s,rt),4)}, {c}")
            F = P.add(ms, VQ_RDR if T == 4 else VQ_RD, s*QKS + toff[T], s*QKS + toff[T] + 1792)
            if T == 0 and s % 4 == 0: P.bar[F] = [("qd", s//4)]
    FQ = P.n()
    units = []; sched = []
    R288 = 288*9216
    def add_v(reg, d): return [("vx", f"v_add_u32 v{reg}, {d & 0xffffffff}, v{reg}")]
    rot = [(0,1,2), (1,2,0), (2,0,1), (0,1,2)]
    hb_prev = None
    for i in range(4):
        A, B, C = [X(x) for x in rot[i]]
        uG0 = len(units); units.append(("G", add_v(V_DGU, R288))); units.append(("G", add_v(V_DGU, -R288)))
        sched.append(dict(kind="GU", acc=A, units=(uG0, uG0+1), ft0=0, name=f"Ga{i}"))
        sched.append(dict(kind="GU", acc=B, units=(uG0, uG0+1), ft0=2, name=f"Gb{i}"))
        if i > 0:
            u = len(units); units.append(("D", add_v(V_DD, SLOT)))
            sched.append(dict(kind="D", h=hb_prev, units=(u,), first=False, name=f"Db{i-1}"))
        uU0 = len(units); units.append(("U", add_v(V_DGU, R288))); units.append(("U", add_v(V_DGU, -R288 + 128)))
        sched.append(dict(kind="GU", acc=C, units=(uU0, uU0+1), ft0=0, name=f"Ua{i}"))
        sched.append(dict(kind="GU", acc=A, units=(uU0, uU0+1), ft0=2, name=f"Ub{i}"))
        u = len(units); units.append(("D", add_v(V_DD, SLOT)))
        sched.append(dict(kind="D", h=C, units=(u,), first=(i == 0), name=f"Da{i}"))
        hb_prev = A
    u = len(units); units.append(("GS", None)); sched.append(dict(kind="S", acc=X(1), units=(u,), name="Gs"))
    u = len(units); units.append(("D", [("vx", f"v_add_u32 v{V_DD}, s{S_DDL}, v{V_DD}")])); sched.append(dict(kind="D", h=hb_prev, units=(u,), first=False, name="Db3"))
    u = len(units); units.append(("US", None)); sched.append(dict(kind="S", acc=X(2), units=(u,), name="Us"))
    u = len(units); units.append(("D", None)); sched.append(dict(kind="D", h=X(2), units=(u,), first=False, name="Ds"))
    first_use = {}; start = {}
    for st in sched:
        start[st["name"]] = P.n()
        if st["kind"] == "GU":
            for s in range(18):
                u = st["units"][s // 9]; sb = (u % 4)*SLOT; sp = s % 9
                for fl in range(2):
                    ms = []
                    for rt in range(2):
                        a = vr(st["acc"] + 8*rt + 4*fl, 4); c = a if s > 0 else "0"
                        ms.append(f"v_mfma_f32_16x16x32_bf16 {a}, FRAG, {vr(xn(s,rt),4)}, {c}")
                    o = sb + sp*2048 + (st["ft0"] + fl)*256
                    F = P.add(ms, V_RD, o, o + 1024); first_use.setdefault(u, F)
        elif st["kind"] == "S":
            u = st["units"][0]; sb = (u % 4)*SLOT
            for s in range(18):
                for fl in range(2):
                    ms = []
                    for rt in range(2):
                        a = vr(st["acc"] + 8*rt + 4*fl, 4); c = a if s > 0 else "0"
                        ms.append(f"v_mfma_f32_16x16x32_bf16 {a}, FRAG, {vr(xn(s,rt),4)}, {c}")
                    o = sb + s*1024 + fl*256
                    F = P.add(ms, V_RD, o, o + 512); first_use.setdefault(u, F)
        else:
            u = st["units"][0]; sb = (u % 4)*SLOT
            for dt in range(36):
                ms = []
                for rt in range(2):
                    a = outacc(dt, rt); c = "0" if st["first"] else a
                    ms.append(f"v_mfma_f32_16x16x32_bf16 {a}, FRAG, {vr(st['h']+8*rt,4)}, {c}")
                o = sb + dt*256
                F = P.add(ms, V_RD, o, o + 9216); first_use.setdefault(u, F)
    NF = P.n()
    for u, F in first_use.items(): P.bar[F] = [("dma", u)]
    ql = list(QLEFT)
    if ql: P.spread_dma(ql, 0, 2*len(ql))
    P.spread_dma(q_dma_items(2), 2*len(ql)+2, 2*len(ql)+28)
    P.spread_dma(q_dma_items(3), 2*len(ql)+31, 2*len(ql)+57)
    P.spread_dma(q_dma_items(4), 2*len(ql)+60, 2*len(ql)+74)
    for m, (kind, tail) in enumerate(units):
        if m == 0: f0, f1 = 86, 112
        elif m == 1: f0, f1 = 114, 138
        else:
            f0 = first_use[m-2] - DIST + 2
            f1 = min(first_use[m-1] - DIST - 2, f0 + 30)
        P.spread_dma(mlp_dma(m, kind), f0, f1, tail)
    P.spread(qkv_epilogue_items(), start["Ga0"]+3, start["Gb0"]+33)
    for i in range(4):
        A, B, C = [X(x) for x in rot[i]]
        f0 = start[f"Gb{i}"] + 3; f1 = start[f"Da{i}"] + 15
        mid = (f0 + f1)//2
        assert mid < start[f"Ub{i}"] - 2
        P.spread(gelu_core(A), f0, mid)
        P.spread(gelu_core(B), mid+1, f1)
        Fu = start[f"Ub{i}"]
        P.pre[Fu] = [("s", "s_nop 3")] + ileave2(h_pair(A, C, 0, 0), h_pair(A, C, 1, 0)) + ileave2(h_pair(A, C, 0, 1), h_pair(A, C, 1, 1))
        P.pre[Fu+1] = ileave2(h_pair(A, C, 0, 2), h_pair(A, C, 1, 2)) + ileave2(h_pair(A, C, 0, 3), h_pair(A, C, 1, 3)) + [("s", "s_nop 0")]
        P.spread(h_items(B, A), f1+2, start[f"Da{i}"]+33)
    P.spread(gelu_core(X(1)), start["Db3"]+3, start["Ds"]-2)
    P.pre[start["Ds"]] = [("s", "s_nop 7")] + h_items(X(1), X(2)) + [("s", "s_nop 1")]
    P.fill.setdefault(start["Da0"]+1, []).append(("vm", f"buffer_atomic_add v{V_SIG}, v{V_SIG+1}, s[{R_DBG}:{R_DBG+3}], 0 offen", "sig1"))
    Fp = start["Ds"] + 2
    P.fill.setdefault(Fp, []).extend([("vx", f"v_mbcnt_lo_u32_b32 v{V_POLL1+1}, -1, 0"), ("vx", f"v_mbcnt_hi_u32_b32 v{V_POLL1+1}, -1, v{V_POLL1+1}"),
        ("vx", f"v_add_u32 v{V_POLL1+1}, s{S_W}, v{V_POLL1+1}"), ("vx", f"v_min_u32 v{V_POLL1+1}, 1, v{V_POLL1+1}"), ("vx", f"v_lshlrev_b32 v{V_POLL1+1}, 31, v{V_POLL1+1}"),
        ("vm", f"buffer_load_dword v{V_POLL1}, v{V_POLL1+1}, s[{R_DBG}:{R_DBG+3}], 0 offen sc1", "poll1")])
    if STAMPS:
        P.hook[FQ] = lambda k_: stamp(k_, "qkv_end")
        P.hook[start["Ga2"]] = lambda k_: stamp(k_, "Ga2cyc", real=False)
        P.hook[start["Ds"]] = lambda k_: stamp(k_, "Dscyc", real=False)
    P.emit()
    return P

def partial_store(k, tmp=X0, lane=T0):
    e = k.e
    L = lane
    e(f"v_mbcnt_lo_u32_b32 v{L}, -1, 0"); e(f"v_mbcnt_hi_u32_b32 v{L}, -1, v{L}"); e(f"v_lshlrev_b32 v{L}, 4, v{L}")
    e("s_nop 7")
    B = tmp
    for dt in range(36):
        pk = B + 16*(dt % 2) + 8
        tb = B + 16*(dt % 2)
        for rt in range(2):
            i0 = 8*dt + 4*rt
            if i0 < 256:
                for i in range(4): e(f"v_accvgpr_read_b32 v{tb+4*rt+i}, a{i0+i}")
                src = tb + 4*rt
            else:
                src = OUTV + i0 - 256
            e(f"v_cvt_pk_bf16_f32 v{pk+2*rt}, v{src}, v{src+1}")
            e(f"v_cvt_pk_bf16_f32 v{pk+2*rt+1}, v{src+2}, v{src+3}")
        if dt % 4 == 0: e(f"s_add_u32 s{S_T2}, s{S_POFF}, {dt*1024}")
        k.vmem(f"buffer_store_dwordx4 {vr(pk,4)}, v{L}, s[{R_WS}:{R_WS+3}], s{S_T2} offen offset:{(dt%4)*1024} sc1", "pst")

S_DDL = 93
ATTN = True
def gen_la_body():
    k = K()
    _stamp_n[0] = 0; STAMP_NAMES.clear()
    prologue(k)
    store_addr_setup(k)
    single_setup(k)
    stamp(k, "setup")
    layernorm(k)
    stamp(k, "ln_end")
    gemm_phases(k)
    stamp(k, "gemm_end")
    if ATTN:
        import attn
        attn.attention_phase(k)
    else:
        partial_store(k)
        k.e("s_waitcnt vmcnt(0)")
        stamp_dump(k)
    k.label("L_la_end")
    return k

if __name__ == "__main__":
    k = gen_la_body()
    errs = check_hazards(k.lines, "la")
    print(len(k.lines), "lines;", len(errs), "hazard errors")
    for x in errs[:40]: print(x)
```

```python
from common import *
from engine import *
from layout import *

S_W, S_RB, S_CB = 3, 4, 5
S_X, S_WO, S_OUT, S_WS = 6, 8, 10, 12
R_X, R_WO, R_OUT, R_WS = 16, 20, 24, 28
S_T = 32
S_LB = 40
S_OM, S_OR, S_R = 41, 42, 43
V_L = 1
V_RD = 2
V_DM, V_DS = 3, 4
V_OM, V_OR = 5, 6
V_R = 7
V_XO = 8
T0 = 10
FR, NFR, DIST = 16, 5, 4
ACC = 36
XR = 68
OB = 84
LDS = 73728
def srd(k, r, lo, hi, nrec):
    k.e(f"s_mov_b32 s{r}, {lo}"); k.e(f"s_mov_b32 s{r+1}, {hi}"); k.e(f"s_mov_b32 s{r+2}, {nrec}"); k.e(f"s_mov_b32 s{r+3}, 0x20000")

def gen_lb_body():
    k = K(); e = k.e
    e("s_cmp_ge_u32 s2, 144"); e("s_cbranch_scc1 L_lb_end")
    e(f"s_load_dwordx2 s[{S_X}:{S_X+1}], s[0:1], 0"); e(f"s_load_dwordx2 s[{S_WO}:{S_WO+1}], s[0:1], 16")
    e(f"s_load_dwordx2 s[{S_OUT}:{S_OUT+1}], s[0:1], 56"); e(f"s_load_dwordx2 s[{S_WS}:{S_WS+1}], s[0:1], 72")
    t0, t1, t2, t3 = T0, T0+1, T0+2, T0+3
    e(f"v_lshrrev_b32 v{t0}, 6, v0"); e(f"v_and_b32 v{V_L}, 63, v0"); e("s_nop 0")
    e(f"v_readfirstlane_b32 s{S_W}, v{t0}")
    e(f"s_mul_i32 s{S_RB}, s2, 7282"); e(f"s_lshr_b32 s{S_RB}, s{S_RB}, 16"); e(f"s_mul_i32 s{S_T}, s{S_RB}, 9"); e(f"s_sub_u32 s{S_CB}, s2, s{S_T}")
    L = V_L
    e(f"v_and_b32 v{t0}, 31, v{L}"); e(f"v_lshlrev_b32 v{t0}, 3, v{t0}"); e(f"v_lshrrev_b32 v{t1}, 5, v{L}"); e(f"v_mul_u32_u24 v{t1}, 36864, v{t1}"); e(f"v_add_u32 v{V_RD}, v{t0}, v{t1}")
    e(f"v_lshrrev_b32 v{t2}, 4, v{L}"); e(f"v_lshlrev_b32 v{t2}, 5, v{t2}"); e(f"v_and_b32 v{t3}, 1, v{L}"); e(f"v_lshl_add_u32 v{t2}, v{t3}, 4, v{t2}")
    e(f"s_lshl_b32 s{S_T}, s{S_CB}, 7"); e(f"v_add_u32 v{t2}, s{S_T}, v{t2}")
    e(f"v_bfe_u32 v{t0}, v{L}, 3, 1"); e(f"v_bfe_u32 v{t1}, v{L}, 1, 2")
    e(f"v_lshl_add_u32 v{t3}, v{t0}, 3, v{t1}"); e(f"v_mul_u32_u24 v{t3}, 1152, v{t3}"); e(f"v_add_u32 v{V_DM}, v{t3}, v{t2}")
    e(f"v_lshrrev_b32 v{t3}, 1, v{t1}"); e(f"v_lshl_add_u32 v{t3}, v{t0}, 2, v{t3}"); e(f"v_mul_u32_u24 v{t3}, 18, v{t3}")
    e(f"v_and_b32 v{t1}, 1, v{t1}"); e(f"v_add_u32 v{t3}, v{t3}, v{t1}"); e(f"v_mul_u32_u24 v{t3}, 1152, v{t3}"); e(f"v_add_u32 v{V_DS}, v{t3}, v{t2}")
    e(f"s_and_b32 s{S_T}, s{S_W}, 1"); e(f"s_cmp_eq_u32 s{S_T}, 1"); e("s_cselect_b64 vcc, -1, 0")
    e(f"v_cndmask_b32 v{V_DS}, v{V_DM}, v{V_DS}, vcc")
    e(f"s_mul_i32 s{S_LB}, s{S_W}, 18432")
    e(f"v_lshrrev_b32 v{t0}, 5, v{L}"); e(f"v_lshlrev_b32 v{t0}, 16, v{t0}"); e(f"v_and_b32 v{t1}, 15, v{L}"); e(f"v_lshl_add_u32 v{t0}, v{t1}, 5, v{t0}")
    e(f"v_bfe_u32 v{t2}, v{L}, 4, 1"); e(f"v_lshl_add_u32 v{V_OM}, v{t2}, 4, v{t0}")
    e(f"v_lshlrev_b32 v{t0}, 7, v{t1}"); e(f"v_lshrrev_b32 v{t2}, 4, v{L}"); e(f"v_lshl_add_u32 v{V_OR}, v{t2}, 4, v{t0}")
    e(f"v_lshlrev_b32 v{V_R}, 5, v{L}")
    e(f"s_lshl_b32 s{S_T}, s{S_RB}, 7"); e(f"s_lshl_b32 s{S_T+1}, s{S_W}, 5"); e(f"s_add_u32 s{S_T}, s{S_T}, s{S_T+1}")
    e(f"s_lshl_b32 s{S_OM}, s{S_T}, 5"); e(f"s_add_u32 s{S_OM}, s{S_OM}, {OM}")
    e(f"s_lshl_b32 s{S_OR}, s{S_T}, 7"); e(f"s_add_u32 s{S_OR}, s{S_OR}, {OR_}")
    e(f"s_lshl_b32 s{S_R}, s{S_RB}, 2"); e(f"s_add_u32 s{S_R}, s{S_R}, s{S_W}"); e(f"s_mul_i32 s{S_R}, s{S_R}, 36"); e(f"s_lshl_b32 s{S_T+1}, s{S_CB}, 2"); e(f"s_add_u32 s{S_R}, s{S_R}, s{S_T+1}")
    e(f"s_lshl_b32 s{S_R}, s{S_R}, 11"); e(f"s_add_u32 s{S_R}, s{S_R}, {RR}")
    e(f"s_mul_i32 s{S_T+2}, s{S_T}, 1152"); e(f"s_lshl_b32 s{S_T+1}, s{S_CB}, 7"); e(f"s_add_u32 s{S_T+2}, s{S_T+2}, s{S_T+1}")
    e(f"v_and_b32 v{t0}, 15, v{L}"); e(f"v_mul_u32_u24 v{t0}, 1152, v{t0}"); e(f"v_lshrrev_b32 v{t1}, 4, v{L}")
    e(f"v_lshl_add_u32 v{V_XO}, v{t1}, 3, v{t0}")
    e(f"v_and_b32 v{t2}, 1, v{t1}"); e(f"v_lshl_add_u32 v{t0}, v{t2}, 5, v{t0}"); e(f"v_lshrrev_b32 v{t1}, 1, v{t1}"); e(f"v_lshl_add_u32 v{V_XO+1}, v{t1}, 4, v{t0}")
    e("s_waitcnt lgkmcnt(0)")
    srd(k, R_WO, f"s{S_WO}", f"s{S_WO+1}", 576*1152)
    srd(k, R_WS, f"s{S_WS}", f"s{S_WS+1}", WS_END)
    e(f"s_add_u32 s{R_X}, s{S_X}, s{S_T+2}"); e(f"s_addc_u32 s{R_X+1}, s{S_X+1}, 0"); e(f"s_sub_u32 s{R_X+2}, {2048*1152}, s{S_T+2}"); e(f"s_mov_b32 s{R_X+3}, 0x20000")
    e(f"s_add_u32 s{R_OUT}, s{S_OUT}, s{S_T+2}"); e(f"s_addc_u32 s{R_OUT+1}, s{S_OUT+1}, 0"); e(f"s_sub_u32 s{R_OUT+2}, {2048*1152}, s{S_T+2}"); e(f"s_mov_b32 s{R_OUT+3}, 0x20000")
    e(f"s_lshr_b32 s{S_T+3}, s{S_W}, 1")
    e(f"s_and_b32 s{S_T+4}, s{S_W}, 1")
    for n in range(18):
        se, so, rd = n >> 1, 9 + (n >> 1), n & 1
        re_ = 36*se + 4*rd
        ro_ = 36*so + 4*rd if so < 16 else 18*(16*(so-16) + 2*rd) + 16
        ge, go = 18, (18 if so < 16 else 18*8)
        e(f"s_cmp_eq_u32 s{S_T+4}, 1")
        e(f"s_mov_b32 s{S_T+5}, {re_}"); e(f"s_cselect_b32 s{S_T+5}, {ro_}, s{S_T+5}")
        if ge != go:
            e(f"s_mov_b32 s{S_T+6}, {ge}"); e(f"s_cselect_b32 s{S_T+6}, {go}, s{S_T+6}"); e(f"s_mul_i32 s{S_T+6}, s{S_T+6}, s{S_T+3}")
        else:
            e(f"s_mul_i32 s{S_T+6}, s{S_T+3}, {ge}")
        e(f"s_add_u32 s{S_T+5}, s{S_T+5}, s{S_T+6}"); e(f"s_mul_i32 s{S_T+5}, s{S_T+5}, 1152")
        e(f"s_add_u32 m0, s{S_LB}, {n*1024}"); e("s_nop 0")
        k.vmem(f"buffer_load_dwordx4 v{V_DS if n >= 14 else V_DM}, s[{R_WO}:{R_WO+3}], s{S_T+5} offen lds", ("wo", n))
    for ft in range(4):
        e(f"s_add_u32 s{S_T+5}, s{S_R}, {ft*2048}")
        for rt in range(2):
            k.vmem(f"buffer_load_dwordx4 {vr(ACC+8*ft+4*rt,4)}, v{V_R}, s[{R_WS}:{R_WS+3}], s{S_T+5} offen offset:{16*rt}", "r")
    for s in range(18):
        for rt in range(2):
            if s < 16:
                e(f"s_add_u32 s{S_T+5}, s{S_OM}, {s*131072 + rt*512}")
                k.vmem(f"buffer_load_dwordx4 {vr(OB+8*s+4*rt,4)}, v{V_OM}, s[{R_WS}:{R_WS+3}], s{S_T+5} offen", ("o", s))
            else:
                e(f"s_add_u32 s{S_T+5}, s{S_OR}, {rt*2048}")
                k.vmem(f"buffer_load_dwordx4 {vr(OB+8*s+4*rt,4)}, v{V_OR}, s[{R_WS}:{R_WS+3}], s{S_T+5} offen offset:{64*(s-16)}", ("o", s))
    e(f"s_mov_b32 s{S_T+6}, 18432")
    e(f"s_mov_b32 s{S_T+7}, 0x00003f80"); e(f"s_mov_b32 s{S_T+4}, 0x3f800000")
    P = Pipe(k, FR, NFR, DIST)
    P.base = {V_RD: 0}
    for s in range(18):
        for ft in range(4):
            ms = [f"v_mfma_f32_16x16x32_bf16 {vr(ACC+8*ft+4*rt,4)}, FRAG, {vr(OB+8*s+4*rt,4)}, {vr(ACC+8*ft+4*rt,4)}" for rt in range(2)]
            o = s*2048 + ft*256
            F = P.add(ms, V_RD, o, o + 1024)
            if ft == 0: P.pre[F] = [("wvm", "", ("o", s))]
    P.bar[0] = [("wo", 17)]
    xit = []
    for ft in range(4):
        for rt in range(2):
            xit.append([("vm", f"buffer_load_dwordx2 {vr(XR+4*ft+2*rt,2)}, v{V_XO}, s[{R_X}:{R_X+3}], {'0' if rt == 0 else f's{S_T+6}'} offen offset:{32*ft}", "x")])
    P.spread_dma(xit, 8, 24)
    P.emit()
    k.wait_vm("x")
    e("s_nop 7")
    for ft in range(4):
        for rt in range(2):
            a = ACC + 8*ft + 4*rt; xr = XR + 4*ft + 2*rt
            e(f"v_dot2c_f32_bf16 v{a}, s{S_T+7}, v{xr}"); e(f"v_dot2c_f32_bf16 v{a+1}, s{S_T+4}, v{xr}")
            e(f"v_dot2c_f32_bf16 v{a+2}, s{S_T+7}, v{xr+1}"); e(f"v_dot2c_f32_bf16 v{a+3}, s{S_T+4}, v{xr+1}")
    e("s_nop 2")
    n = 0
    for f0 in (0, 2):
        for rt in range(2):
            T = FR + 4*n; n += 1
            for j in range(2):
                a = ACC + 8*(f0+j) + 4*rt
                e(f"v_cvt_pk_bf16_f32 v{T+2*j}, v{a}, v{a+1}"); e(f"v_cvt_pk_bf16_f32 v{T+2*j+1}, v{a+2}, v{a+3}")
            e("s_nop 1")
            e(f"v_permlane16_swap_b32 v{T}, v{T+2}"); e(f"v_permlane16_swap_b32 v{T+1}, v{T+3}")
            k.vmem(f"buffer_store_dwordx4 {vr(T,4)}, v{V_XO+1}, s[{R_OUT}:{R_OUT+3}], {'0' if rt == 0 else f's{S_T+6}'} offen offset:{32*f0}", "st")
    k.label("L_lb_end")
    return k

if __name__ == "__main__":
    k = gen_lb_body()
    errs = check_hazards(k.lines, "lb")
    print(len(k.lines), "lines;", len(errs), "hazard errors")
    for x in errs[:20]: print(x)
```

```python
import sys
from build import *
import la2 as la, attn, lb
name = "parallel_sum__softmax_full_mha__glu_gated_geglu__prompt"
la.STAMPS = 'stamp' in sys.argv
for a in sys.argv:
    if a.startswith('st='): la.STAMP_SET = set(a[3:].split(','))
    if a.startswith('set:'):
        mod, rest = a[4:].split('.'); kk, vv = rest.split('='); setattr({'la': la, 'attn': attn, 'lb': lb}[mod], kk, int(vv))
ka = la.gen_la_body(); kb = lb.gen_lb_body()
bad = 0
for nm, k in (("la", ka), ("lb", kb)):
    errs = check_hazards(k.lines, nm); bad += len(errs)
    print(nm, len(k.lines), "lines;", len(errs), "hazard errors")
    for x in errs[:20]: print(x)
OUTP = next((a[4:] for a in sys.argv if a.startswith('out=')), 'full.s')
build([dict(name="la_kernel", body=ka.text(), vgpr=512, accum=256, grid=256, block=256, lds=attn.LDS_TOTAL),
       dict(name="lb_kernel", body=kb.text(), vgpr=228, accum=228, grid=144, block=256, lds=lb.LDS)], OUTP)
print(assemble_for_test(OUTP))
open(OUTP.replace('.s', '.stamps'), 'w').write(' '.join(la.STAMP_NAMES))
```
